```python
import torch

def _softmax(x, axis=-1):
    return torch.softmax(x, dim=axis)
def _gelu(x):
    return torch.nn.functional.gelu(x, approximate="tanh")
def _silu(x):
    return torch.nn.functional.silu(x)
def _sigmoid(x):
    return torch.sigmoid(x)
def _layernorm(x, axis=-1, eps=1e-5):
    m = x.mean(dim=axis, keepdim=True)
    v = x.var(dim=axis, keepdim=True, unbiased=False)
    return (x - m) / torch.sqrt(v + eps)
def _scatter_add(tgt, idx, src, axis=0):
    return tgt.clone().index_add_(axis, idx, src)
def _segment_sum(src, seg, n):
    out = torch.zeros((n,) + src.shape[1:], dtype=src.dtype)
    return out.index_add_(0, seg, src)
def _pad(x, pw):
    flat = tuple(v for pair in reversed(pw) for v in pair)
    return torch.nn.functional.pad(x, flat)

kernel_name = 'sequential_preLN__spectral_gfnet__mixer_channel_mlp__prompt'

def setup_inputs():

    _w = (lambda a: (lambda t: t.to(torch.bfloat16) if t.is_floating_point() else t)(torch.as_tensor(a)))
    def _A_setup():
        B, S, D = 1, 2048, 640
        Df = D // 2 + 1
        return {
            "x": _w((lambda *s: torch.randn(*s, dtype=torch.bfloat16) * 0.05)(B, S, D)),
            "w_r": _w((lambda *s: torch.randn(*s, dtype=torch.bfloat16) * 0.8)(S, Df) * 0.02),
            "w_i": _w((lambda *s: torch.randn(*s, dtype=torch.bfloat16) * 0.8)(S, Df) * 0.02),
        }
    _A_in = _A_setup()

    def _B_setup():
        B, S, D, F = 1, 2048, 640, 1728
        return {
            "x": _w((lambda *s: torch.randn(*s, dtype=torch.bfloat16) * 0.05)(B, S, D)),
            "w1": _w((lambda *s: torch.randn(*s, dtype=torch.bfloat16) * 0.8)(D, F) * (D ** -0.5)),
            "b1": _w((lambda *s: torch.randn(*s, dtype=torch.bfloat16) * 0.4)(F)),
            "w2": _w((lambda *s: torch.randn(*s, dtype=torch.bfloat16) * 0.05)(F, D) * (F ** -0.5)),
            "b2": _w((lambda *s: torch.randn(*s, dtype=torch.bfloat16) * 0.05)(D)),
        }
    _B_in = _B_setup()

    return {
        "A_x": _A_in["x"],
        "A_w_r": _A_in["w_r"],
        "A_w_i": _A_in["w_i"],
        "B_x": _B_in["x"],
        "B_w1": _B_in["w1"],
        "B_b1": _B_in["b1"],
        "B_w2": _B_in["w2"],
        "B_b2": _B_in["b2"],
    }

def reference(A_x, A_w_r, A_w_i, B_x, B_w1, B_b1, B_w2, B_b2):
    def _A_ref(x, w_r, w_i):
        B, S, D = x.shape
        X = (lambda x, axes=(-2,-1): torch.fft.rfft2(x.float(), dim=axes))(x, axes=(-2, -1))
        W = w_r + 1j * w_i
        X = X * W
        y = (lambda x, s, axes=(-2,-1): torch.fft.irfft2(x, s=s, dim=axes).to(torch.bfloat16))(X, (S, D), axes=(-2, -1))
        return y

    def _B_ref(x, w1, b1, w2, b2):
        y = _layernorm(x, axis=-1)
        h = _gelu(torch.einsum("bsd,df->bsf", y, w1) + b1)
        return torch.einsum("bsf,fd->bsd", h, w2) + b2

    x = A_x
    h = x + _A_ref(_layernorm(x, axis=-1), A_w_r, A_w_i)
    h2 = h + _B_ref(_layernorm(h, axis=-1), B_w1, B_b1, B_w2, B_b2)
    return h2
```

```python
import re

TRANS = ("v_exp_f32", "v_log_f32", "v_rcp_f32", "v_rsq_f32", "v_sqrt_f32", "v_sin_f32", "v_cos_f32",
         "v_rcp_iflag_f32", "v_exp_f16", "v_log_f16", "v_rcp_f16", "v_rsq_f16", "v_sqrt_f16")
DPP_MODS = ("quad_perm:", "row_shl:", "row_shr:", "row_ror:", "wave_shl:", "wave_rol:", "wave_shr:", "wave_ror:",
            "row_mirror", "row_half_mirror", "row_bcast:", "row_newbcast:", "row_share:", "row_xmask:")


class VR:
    _cnt = 0

    def __init__(self, n, name=""):
        self.n = n
        self.name = name
        self.phys = None
        VR._cnt += 1
        self.id = VR._cnt

    def __getitem__(self, idx):
        if isinstance(idx, slice):
            a = idx.start or 0
            b = self.n if idx.stop is None else idx.stop
            return Sub(self, a, b - a)
        return Sub(self, idx, 1)

    @property
    def x(self): return Sub(self, 0, 1)
    @property
    def y(self): return Sub(self, 1, 1)

    def root(self): return self


class Sub:
    def __init__(self, vr, off, n):
        assert 0 <= off and off + n <= vr.n, (off, n, vr.n)
        self.vr = vr; self.off = off; self.n = n

    def __getitem__(self, idx):
        if isinstance(idx, slice):
            a = idx.start or 0
            b = self.n if idx.stop is None else idx.stop
            return Sub(self.vr, self.off + a, b - a)
        return Sub(self.vr, self.off + idx, 1)

    @property
    def x(self): return Sub(self.vr, self.off, 1)
    @property
    def y(self): return Sub(self.vr, self.off + 1, 1)

    def root(self): return self.vr


def _fmt_reg(base, n, pfx="v"):
    return f"{pfx}{base}" if n == 1 else f"{pfx}[{base}:{base + n - 1}]"


class Instr:
    __slots__ = ("fmt", "ops", "ndef", "text", "comment")

    def __init__(self, fmt, ops, ndef):
        self.fmt = fmt; self.ops = ops; self.ndef = ndef; self.text = None


class Kernel:
    def __init__(self, name, max_vgpr=256, first_vgpr=0):
        self.name = name
        self.items = []
        self.max_vgpr = max_vgpr
        self.reserved = set(range(first_vgpr))
        self.vgpr_hi = first_vgpr
        self.sgpr_next = 0
        self.label_cnt = 0

    def raw(self, text):
        for line in text.strip("\n").split("\n"):
            self.items.append(line.strip())

    def label(self, name):
        self.items.append(name + ":")

    def newlabel(self, pfx="L"):
        self.label_cnt += 1
        return f"{pfx}_{self.name}_{self.label_cnt}"

    def pin(self, base, n=1):
        for r in range(base, base + n):
            self.reserved.add(r)
        self.vgpr_hi = max(self.vgpr_hi, base + n)

    def I(self, fmt, *ops, ndef=1):
        self.items.append(Instr(fmt, list(ops), ndef))

    def vr(self, n=1, name=""):
        return VR(n, name)

    def _allocate(self):
        last_use = {}
        first = {}
        for idx, it in enumerate(self.items):
            if isinstance(it, Instr):
                for o in it.ops:
                    if isinstance(o, (VR, Sub)):
                        r = o.root()
                        last_use[r.id] = idx
                        first.setdefault(r.id, idx)
        free = [r not in self.reserved for r in range(self.max_vgpr)]
        live = {}

        def alloc(vr):
            n = vr.n
            al = 1 if n == 1 else 2
            if n >= 4: al = 2
            b = 0
            while b + n <= self.max_vgpr:
                if all(free[b:b + n]):
                    for r in range(b, b + n): free[r] = False
                    vr.phys = b
                    live[vr.id] = vr
                    self.vgpr_hi = max(self.vgpr_hi, b + n)
                    return
                b += al
            raise RuntimeError(f"out of VGPRs allocating {vr.name}[{n}] in {self.name}")

        for idx, it in enumerate(self.items):
            if not isinstance(it, Instr):
                continue
            for o in it.ops:
                if isinstance(o, (VR, Sub)):
                    r = o.root()
                    if r.phys is None:
                        alloc(r)
            strs = []
            for o in it.ops:
                if isinstance(o, VR):
                    strs.append(_fmt_reg(o.phys, o.n))
                elif isinstance(o, Sub):
                    strs.append(_fmt_reg(o.vr.phys + o.off, o.n))
                else:
                    strs.append(str(o))
            it.text = it.fmt.format(*strs)
            for o in it.ops:
                if isinstance(o, (VR, Sub)):
                    r = o.root()
                    if last_use[r.id] == idx and r.id in live:
                        for q in range(r.phys, r.phys + r.n): free[q] = True
                        del live[r.id]

    def lines(self):
        self._allocate()
        out = []
        for it in self.items:
            out.append(it.text if isinstance(it, Instr) else it)
        return pad_hazards(out)


_REG = re.compile(r"^(v|s|a)(\d+)$")
_RNG = re.compile(r"^(v|s|a)\[(\d+):(\d+)\]$")


def _split_ops(s):
    ops = []; depth = 0; cur = ""
    for ch in s:
        if ch == "[": depth += 1
        if ch == "]": depth -= 1
        if ch == "," and depth == 0:
            ops.append(cur.strip()); cur = ""
        else:
            cur += ch
    if cur.strip(): ops.append(cur.strip())
    return ops


def _regs_of(tok):
    tok = tok.strip()
    t0 = tok.split(" ")[0] if " " in tok else tok
    t0 = t0.lstrip("-").strip("|")
    m = _REG.match(t0)
    if m: return {(m.group(1), int(m.group(2)))}
    m = _RNG.match(t0)
    if m: return {(m.group(1), i) for i in range(int(m.group(2)), int(m.group(3)) + 1)}
    if t0 in ("vcc",): return {("s", 106), ("s", 107)}
    if t0 == "vcc_lo": return {("s", 106)}
    if t0 == "vcc_hi": return {("s", 107)}
    if t0 in ("exec", "exec_lo", "exec_hi"): return {("exec", 0)}
    if t0 == "m0": return {("m0", 0)}
    return set()


class _Rec:
    __slots__ = ("mn", "kind", "dst", "src", "srcC", "passes", "ws", "dpp", "wide_store", "text", "lds_dma")


def _mfma_passes(mn):
    if "32x32x16" in mn or "32x32x8" in mn or "32x32x32" in mn: return 8
    if "16x16x32" in mn or "16x16x16" in mn or "16x16x64" in mn: return 4
    if "32x32x2_f32" in mn: return 16
    if "16x16x4_f32" in mn: return 8
    raise RuntimeError("unknown mfma " + mn)


def _classify(line):
    r = _Rec()
    r.text = line
    code = line.split(";")[0].strip()
    parts = code.split(None, 1)
    mn = parts[0]
    rest = parts[1] if len(parts) > 1 else ""
    ops = _split_ops(rest)
    r.mn = mn; r.dst = set(); r.src = set(); r.srcC = set(); r.passes = 0; r.ws = 1
    r.dpp = any(m in code for m in DPP_MODS); r.wide_store = False; r.lds_dma = False
    regs = [_regs_of(o) for o in ops]
    if mn == "s_nop":
        r.kind = "nop"; r.ws = int(ops[0], 0) + 1
    elif mn.startswith("v_mfma"):
        r.kind = "mfma"; r.passes = _mfma_passes(mn)
        r.dst = regs[0]; r.src = regs[1] | regs[2] | regs[3]; r.srcC = regs[3]
    elif mn.startswith("v_"):
        r.kind = "trans" if mn in TRANS else "valu"
        r.dst = regs[0] if regs else set()
        for x in regs[1:]: r.src |= x
        if "_co_" in mn and len(regs) > 1:
            r.dst = regs[0] | regs[1]
            r.src = set()
            for x in regs[2:]: r.src |= x
        if mn.startswith("v_cndmask") and len(ops) == 3:
            r.src |= {("s", 106), ("s", 107)}
    elif mn.startswith("buffer_") or mn.startswith("global_") or mn.startswith("flat_"):
        r.kind = "vmem"
        is_store = "store" in mn or "atomic" in mn
        lds = re.search(r"\blds\b", code) is not None
        r.lds_dma = lds
        if is_store or lds:
            for x in regs: r.src |= x
        else:
            r.dst = regs[0]
            for x in regs[1:]: r.src |= x
        if is_store and ("x3" in mn or "x4" in mn): r.wide_store = True
    elif mn.startswith("ds_"):
        r.kind = "ds"
        if mn.startswith("ds_read") or mn.startswith("ds_bpermute") or mn.startswith("ds_permute"):
            r.dst = regs[0]
            for x in regs[1:]: r.src |= x
        else:
            for x in regs: r.src |= x
    elif mn.startswith("s_"):
        r.kind = "salu"
        if mn in ("s_waitcnt", "s_barrier", "s_endpgm", "s_branch", "s_setprio", "s_sleep") or mn.startswith("s_cbranch"):
            pass
        elif mn.startswith("s_cmp"):
            for x in regs: r.src |= x
        elif mn.startswith("s_load") or mn.startswith("s_buffer_load"):
            r.kind = "smem"
            r.dst = regs[0]
            for x in regs[1:]: r.src |= x
        else:
            r.dst = regs[0] if regs else set()
            for x in regs[1:]: r.src |= x
    else:
        r.kind = "other"
    return r


def _is_instr(line):
    s = line.strip()
    if not s or s.startswith(";") or s.startswith(".") or s.startswith("//"): return False
    if s.split(";")[0].strip().endswith(":"): return False
    return True


def _need(prod, cons):
    need = 0
    pk, ck = prod.kind, cons.kind
    c_valu = ck in ("valu", "trans")
    p_valu = pk in ("valu", "trans")
    if p_valu:
        sd = {x for x in prod.dst if x[0] == "s"}
        vd = {x for x in prod.dst if x[0] in ("v", "a")}
        if sd:
            if ck == "vmem" and sd & cons.src: need = max(need, 5)
            if c_valu and sd & cons.src: need = max(need, 2)
            if cons.mn in ("v_readlane_b32", "v_writelane_b32") and sd & cons.src: need = max(need, 4)
        if vd:
            if c_valu and cons.dpp and vd & cons.src: need = max(need, 2)
            if cons.mn in ("v_readfirstlane_b32", "v_readlane_b32") and vd & cons.src: need = max(need, 1)
            if ck == "mfma" and vd & cons.src: need = max(need, 2)
            if cons.mn.startswith("v_permlane") and vd & (cons.src | cons.dst): need = max(need, 2)
            if pk == "trans" and (c_valu or ck in ("vmem", "ds")) and vd & cons.src: need = max(need, 1)
    if prod.wide_store:
        if (c_valu or ck in ("vmem", "ds", "mfma")) and (prod.src & cons.dst): need = max(need, 2)
    if pk == "salu" and ("m0", 0) in prod.dst and cons.lds_dma: need = max(need, 1)
    if pk == "mfma":
        P = prod.passes
        tab_rw = {2: 5, 4: 8, 8: 12, 16: 20}[P]
        tab_ov = {2: 4, 4: 6, 8: 10, 16: 18}[P]
        tab_war = {2: 1, 4: 3, 8: 7, 16: 15}[P]
        D = prod.dst
        if ck == "mfma":
            if D & (cons.src - cons.srcC): need = max(need, tab_rw)
            if D & cons.srcC:
                if cons.srcC == D and cons.passes == P:
                    need = max(need, 2 if P == 2 else 0)
                else:
                    need = max(need, tab_ov)
        else:
            if D & (cons.src | cons.dst): need = max(need, tab_rw)
            if c_valu and (prod.srcC & cons.dst): need = max(need, tab_war)
    return need


MAXD = 24


def pad_hazards(lines):
    out = []
    hist = []
    for line in lines:
        if not _is_instr(line):
            out.append(line)
            s = line.strip()
            if s.endswith(":"):
                pass
            continue
        cons = _classify(line)
        dist = 0
        worst = 0
        for prod in reversed(hist):
            n = _need(prod, cons)
            if n > dist:
                worst = max(worst, n - dist)
            dist += prod.ws
            if dist > MAXD: break
        while worst > 0:
            k = min(worst, 16)
            nopl = f"s_nop {k - 1}"
            out.append(nopl)
            hist.append(_classify(nopl))
            worst -= k
        out.append(line)
        hist.append(cons)
        if len(hist) > 64: hist = hist[-48:]
    return out
```

```python
HEADER_COMMENT = open("sequential_preLN__spectral_gfnet__mixer_channel_mlp__prompt.s.ref").read().split("; Override launch geometry")[0]

def assemble_file(kernels, path):
    out = [HEADER_COMMENT.rstrip("\n")]
    for kd in kernels:
        g = kd["grid"]; b = kd["block"]
        out.append(f"; @launch kernel={kd['name']} grid=({g},1,1) block=({b},1,1) lds={kd['lds']}")
    out.append('.amdgcn_target "amdgcn-amd-amdhsa--gfx950"')
    out.append(".text")
    for kd in kernels:
        n = kd["name"]
        out += [f".globl {n}", ".p2align 8", f".type {n},@function", f"{n}:"]
        out += ["  " + l if not l.endswith(":") else l for l in kd["lines"]]
        out.append("  s_endpgm")
    out.append('.section .rodata,"a"')
    for kd in kernels:
        vg = (kd["vgpr"] + 7) // 8 * 8
        out += [".p2align 6", f".amdhsa_kernel {kd['name']}",
                f"  .amdhsa_next_free_vgpr {vg}",
                f"  .amdhsa_next_free_sgpr {kd.get('sgpr', 102)}",
                f"  .amdhsa_accum_offset {(vg + 3) // 4 * 4}",
                "  .amdhsa_group_segment_fixed_size 0",
                "  .amdhsa_kernarg_size 88",
                "  .amdhsa_user_sgpr_count 2",
                "  .amdhsa_user_sgpr_kernarg_segment_ptr 1",
                "  .amdhsa_system_sgpr_workgroup_id_x 1",
                ".end_amdhsa_kernel"]
    open(path, "w").write("\n".join(out) + "\n")
```

```python
from cplx import f2u

DPP_FULL = "row_mask:0xf bank_mask:0xf"


def wave_sum_multi(k, vals, sregs):
    for st in ("quad_perm:[1,0,3,2]", "quad_perm:[2,3,0,1]", "row_half_mirror", "row_mirror"):
        for v in vals:
            k.I("v_add_f32_dpp {0}, {1}, {1} %s %s" % (st, DPP_FULL), v, v)
    for st, rm in (("row_bcast:15", "0xa"), ("row_bcast:31", "0xc")):
        for v in vals:
            k.I("v_add_f32_dpp {0}, {1}, {1} %s row_mask:%s bank_mask:0xf" % (st, rm), v, v)
    for v, s in zip(vals, sregs):
        k.I("v_readlane_b32 %s, {0}, 63" % s, v, ndef=0)


def bf16r_pair(k, a, b):
    p = k.vr(1, "bfp")
    k.I("v_cvt_pk_bf16_f32 {0}, {1}, {2}", p, a, b)
    k.I("v_lshlrev_b32 {0}, 16, {1}", a, p)
    k.I("v_and_b32 {0}, 0xffff0000, {1}", b, p)


def bf16r_one(k, a):
    p = k.vr(1, "bfp")
    k.I("v_cvt_pk_bf16_f32 {0}, {1}, {1}", p, a)
    k.I("v_lshlrev_b32 {0}, 16, {1}", a, p)


def tree_sum(k, vals):
    cur = list(vals)
    while len(cur) > 1:
        nxt = []
        for i in range(0, len(cur) - 1, 2):
            t = k.vr(1, "sum")
            k.I("v_add_f32 {0}, {1}, {2}", t, cur[i], cur[i + 1])
            nxt.append(t)
        if len(cur) % 2: nxt.append(cur[-1])
        cur = nxt
    if cur[0] in vals or any(cur[0] is v for v in vals):
        t = k.vr(1, "sum"); k.I("v_mov_b32 {0}, {1}", t, cur[0]); return t
    return cur[0]


def layernorm_rows(k, rows, stmp):
    n = len(rows)
    cnt = 64 * len(rows[0])
    inv = f2u(1.0 / cnt)
    sums = [tree_sum(k, r) for r in rows]
    wave_sum_multi(k, sums, stmp[:n])
    means = []
    for i in range(n):
        m = k.vr(1, "mean")
        k.I("v_mov_b32 {0}, %s" % stmp[i], m)
        k.I("v_mul_f32 {0}, 0x%08x, {0}" % inv, m)
        means.append(m)
    sq = []
    for i, r in enumerate(rows):
        acc = k.vr(1, "sq")
        first = True
        for x in r:
            d = k.vr(1, "d")
            k.I("v_sub_f32 {0}, {1}, {2}", d, x, means[i])
            if first:
                k.I("v_mul_f32 {0}, {1}, {1}", acc, d); first = False
            else:
                k.I("v_fma_f32 {0}, {1}, {1}, {0}", acc, d)
        sq.append(acc)
    wave_sum_multi(k, sq, stmp[:n])
    for i, r in enumerate(rows):
        var = k.vr(1, "var")
        k.I("v_mov_b32 {0}, %s" % stmp[i], var)
        k.I("v_mul_f32 {0}, 0x%08x, {0}" % inv, var)
        bf16r_pair(k, var, means[i])
        k.I("v_add_f32 {0}, 0x%08x, {1}" % f2u(1e-5), var, var)
        bf16r_one(k, var)
        k.I("v_sqrt_f32 {0}, {1}", var, var)
        bf16r_one(k, var)
        rden = k.vr(1, "rden")
        k.I("v_rcp_f32 {0}, {1}", rden, var)
        e = k.vr(1, "e")
        k.I("v_fma_f32 {0}, -{1}, {2}, 1.0", e, var, rden)
        k.I("v_fma_f32 {0}, {1}, {0}, {0}", rden, e)
        for j in range(0, len(r), 2):
            a, b = r[j], r[j + 1]
            k.I("v_sub_f32 {0}, {1}, {2}", a, a, means[i])
            k.I("v_sub_f32 {0}, {1}, {2}", b, b, means[i])
            bf16r_pair(k, a, b)
            k.I("v_mul_f32 {0}, {1}, {2}", a, a, rden)
            k.I("v_mul_f32 {0}, {1}, {2}", b, b, rden)
            bf16r_pair(k, a, b)


def twiddles(k, idxf, n, den, name="tw"):
    tw = [None]
    for m in range(1, n):
        f = k.vr(1, "twf")
        k.I("v_mul_f32 {0}, 0x%08x, {1}" % f2u(m / den), f, idxf)
        t = k.vr(2, f"{name}{m}")
        k.I("v_cos_f32 {0}, {1}", t.x, f)
        k.I("v_sin_f32 {0}, {1}", t.y, f)
        tw.append(t)
    return tw
```

```python
import math, struct
from asmlib import VR, Sub


def f2u(x):
    return struct.unpack("<I", struct.pack("<f", x))[0]


class SPool:
    def __init__(self, first, last):
        self.next = first; self.last = last
        self.init = []
        self.cache = {}

    def alloc(self, n=1, align=1):
        b = (self.next + align - 1) // align * align
        assert b + n - 1 <= self.last, "out of SGPRs"
        self.next = b + n
        return b

    def pair(self, a, b):
        key = (f2u(a), f2u(b))
        if key not in self.cache:
            r = self.alloc(2, 2)
            self.init.append(f"s_mov_b32 s{r}, 0x{key[0]:08x}")
            self.init.append(f"s_mov_b32 s{r+1}, 0x{key[1]:08x}")
            self.cache[key] = r
        r = self.cache[key]
        return f"s[{r}:{r+1}]"

    def single(self, a):
        key = (f2u(a),)
        if key not in self.cache:
            r = self.alloc(1, 1)
            self.init.append(f"s_mov_b32 s{r}, 0x{key[0]:08x}")
            self.cache[key] = r
        return f"s{self.cache[key]}"


class C:
    def __init__(self, k, sp):
        self.k = k; self.sp = sp

    def new(self, name=""):
        return self.k.vr(2, name)

    def add(self, a, b, out=None):
        r = out or self.new()
        self.k.I("v_pk_add_f32 {0}, {1}, {2}", r, a, b)
        return r

    def sub(self, a, b, out=None):
        r = out or self.new()
        self.k.I("v_pk_add_f32 {0}, {1}, {2} neg_lo:[0,1] neg_hi:[0,1]", r, a, b)
        return r

    def add_negi(self, a, b, out=None):
        r = out or self.new()
        self.k.I("v_pk_add_f32 {0}, {1}, {2} op_sel:[0,1] op_sel_hi:[1,0] neg_hi:[0,1]", r, a, b)
        return r

    def add_i(self, a, b, out=None):
        r = out or self.new()
        self.k.I("v_pk_add_f32 {0}, {1}, {2} op_sel:[0,1] op_sel_hi:[1,0] neg_lo:[0,1]", r, a, b)
        return r

    def mul(self, z, w, conj=False, out=None):
        t = self.new()
        r = out or self.new()
        self.k.I("v_pk_mul_f32 {0}, {1}, {2} op_sel:[0,0] op_sel_hi:[1,0]", t, z, w)
        if not conj:
            self.k.I("v_pk_fma_f32 {0}, {1}, {2}, {3} op_sel:[1,1,0] op_sel_hi:[0,1,1] neg_lo:[0,1,0]", r, z, w, t)
        else:
            self.k.I("v_pk_fma_f32 {0}, {1}, {2}, {3} op_sel:[1,1,0] op_sel_hi:[0,1,1] neg_hi:[0,1,0]", r, z, w, t)
        return r

    def scale(self, z, s, out=None):
        r = out or self.new()
        self.k.I("v_pk_mul_f32 {0}, {1}, {2}", r, z, self.sp.pair(s, s))
        return r

    def fma_real(self, z, s, acc, out=None):
        r = out or self.new()
        self.k.I("v_pk_fma_f32 {0}, {1}, {2}, {3}", r, z, self.sp.pair(s, s), acc)
        return r

    def mul_const(self, z, ang_num, ang_den, sign):
        num = (sign * ang_num) % ang_den
        if num == 0: return z
        if 2 * num == ang_den:
            r = self.new()
            self.k.I("v_pk_mul_f32 {0}, {1}, {2}", r, z, self.sp.pair(-1.0, -1.0))
            return r
        a = 2 * math.pi * num / ang_den
        return self.mul(z, self.sp.pair(math.cos(a), math.sin(a)))

    def dft(self, xs, sign):
        n = len(xs)
        if n == 1: return list(xs)
        if n == 2: return [self.add(xs[0], xs[1]), self.sub(xs[0], xs[1])]
        if n == 5: return self.dft5(xs, sign)
        if n == 10: return self.dft10(xs, sign)
        assert n % 2 == 0 and (n & (n - 1)) == 0, n
        ev = self.dft(xs[0::2], sign)
        od = self.dft(xs[1::2], sign)
        out = [None] * n
        for j in range(n // 2):
            if j == 0:
                out[0] = self.add(ev[0], od[0]); out[n // 2] = self.sub(ev[0], od[0])
            elif 4 * j == n:
                if sign < 0:
                    out[j] = self.add_negi(ev[j], od[j]); out[j + n // 2] = self.add_i(ev[j], od[j])
                else:
                    out[j] = self.add_i(ev[j], od[j]); out[j + n // 2] = self.add_negi(ev[j], od[j])
            else:
                t = self.mul_const(od[j], j, n, sign)
                out[j] = self.add(ev[j], t); out[j + n // 2] = self.sub(ev[j], t)
        return out

    def dft5(self, x, sign):
        c1 = math.cos(2 * math.pi / 5); c2 = math.cos(4 * math.pi / 5)
        s1 = math.sin(2 * math.pi / 5); s2 = math.sin(4 * math.pi / 5)
        t1 = self.add(x[1], x[4]); t2 = self.add(x[2], x[3])
        t3 = self.sub(x[1], x[4]); t4 = self.sub(x[2], x[3])
        y0 = self.add(x[0], t1); y0 = self.add(y0, t2)
        m1 = self.fma_real(t1, c1, x[0]); m1 = self.fma_real(t2, c2, m1)
        m2 = self.fma_real(t1, c2, x[0]); m2 = self.fma_real(t2, c1, m2)
        n1 = self.scale(t3, s1); n1 = self.fma_real(t4, s2, n1)
        n2 = self.scale(t3, s2); n2 = self.fma_real(t4, -s1, n2)
        if sign < 0:
            y1 = self.add_negi(m1, n1); y4 = self.add_i(m1, n1)
            y2 = self.add_negi(m2, n2); y3 = self.add_i(m2, n2)
        else:
            y1 = self.add_i(m1, n1); y4 = self.add_negi(m1, n1)
            y2 = self.add_i(m2, n2); y3 = self.add_negi(m2, n2)
        return [y0, y1, y2, y3, y4]

    def dft10(self, x, sign):
        u0 = []; u1 = []
        for b in range(5):
            p = x[(2 * b) % 10]; q = x[(5 + 2 * b) % 10]
            u0.append(self.add(p, q)); u1.append(self.sub(p, q))
        d0 = self.dft5(u0, sign); d1 = self.dft5(u1, sign)
        return [(d0 if kk % 2 == 0 else d1)[kk % 5] for kk in range(10)]
```

```python
from asmlib import Kernel
from cplx import C, SPool, f2u
from layout import *
from common import *

P1 = 80
P2 = 11
L_OFF = 0
L_SIZE = 8 * 640 * 4
E1_OFF = L_SIZE
E1_SIZE = 4 * 8 * P1 * 8
E2_OFF = E1_OFF + E1_SIZE
E2_SIZE = 4 * 64 * P2 * 8
LDS_TOTAL = E2_OFF + E2_SIZE


def gen_k1(name="k1_kernel"):
    k = Kernel(name, first_vgpr=1)
    sp = SPool(40, 101)
    cp = C(k, sp)
    done = "L_k1_done"
    k.raw(f"""
s_cmp_ge_u32 s2, 256
s_cbranch_scc1 {done}
s_load_dwordx2 s[4:5], s[0:1], {KA_X}
s_load_dwordx2 s[6:7], s[0:1], {KA_WS}
v_readfirstlane_b32 s16, v0
s_lshr_b32 s16, s16, 6
""")
    init_pos = len(k.items)
    k.raw(f"""
s_waitcnt lgkmcnt(0)
s_mov_b32 s8, s4
s_mov_b32 s9, s5
s_mov_b32 s10, {2048*1280}
s_mov_b32 s11, 0x00020000
s_mov_b32 s12, s6
s_mov_b32 s13, s7
s_mov_b32 s14, {T_SIZE}
s_mov_b32 s15, 0x00020000
""")
    lane = k.vr(1, "lane")
    k.I("v_and_b32 {0}, 63, v0", lane)
    skipA = "L_k1_skipA"
    k.raw(f"""
s_cmp_ge_u32 s16, 4
s_cbranch_scc1 {skipA}
s_lshl_b32 s20, s16, 9
s_add_u32 s20, s20, s2
s_mul_i32 s20, s20, 1280
s_add_u32 s21, s20, {256*1280}
""")
    voff = k.vr(1, "voffx")
    k.I("v_lshlrev_b32 {0}, 2, {1}", voff, lane)
    raw = [[], []]
    for row in range(2):
        for i in range(5):
            v = k.vr(1, f"xr{row}_{i}")
            k.I("buffer_load_dword {0}, {1}, s[8:11], s%d offen offset:%d" % (20 + row, 256 * i), v, voff)
            raw[row].append(v)
    k.raw("s_waitcnt vmcnt(0)")
    rows = []
    for row in range(2):
        vals = []
        for i in range(5):
            p = k.vr(2, f"xv{row}_{i}")
            k.I("v_lshlrev_b32 {0}, 16, {1}", p.x, raw[row][i])
            k.I("v_and_b32 {0}, 0xffff0000, {1}", p.y, raw[row][i])
            vals += [p.x, p.y]
        rows.append(vals)
    layernorm_rows(k, rows, ["s22", "s23"])
    ldsA = k.vr(1, "ldsA")
    k.raw("s_mul_i32 s24, s16, %d" % (2 * 640 * 4))
    k.I("v_lshlrev_b32 {0}, 3, {1}", ldsA, lane)
    k.I("v_add_u32 {0}, s24, {0}", ldsA)
    for row in range(2):
        for i in range(5):
            a = rows[row][2 * i]
            pair = a.root()
            k.I("ds_write_b64 {0}, {1} offset:%d" % (L_OFF + (row * 640 + 128 * i) * 4), ldsA, pair, ndef=0)
    k.label(skipA)
    q = k.vr(1, "q"); r = k.vr(1, "r")
    k.I("v_mul_u32_u24 {0}, 205, v0", q)
    k.I("v_lshrrev_b32 {0}, 14, {0}", q)
    t80 = k.vr(1)
    k.I("v_mul_u32_u24 {0}, 80, {1}", t80, q)
    k.I("v_sub_u32 {0}, v0, {1}", r, t80)
    k1 = k.vr(1, "k1"); u = k.vr(1, "u")
    k.I("v_mul_u32_u24 {0}, 205, {1}", k1, r)
    k.I("v_lshrrev_b32 {0}, 11, {0}", k1)
    t10 = k.vr(1)
    k.I("v_mul_u32_u24 {0}, 10, {1}", t10, k1)
    k.I("v_sub_u32 {0}, {1}, {2}", u, r, t10)
    qf = k.vr(1, "qf")
    k.I("v_cvt_f32_u32 {0}, {1}", qf, q)
    k.I("v_cmp_eq_u32 vcc, 0, {0}", q, ndef=0)
    coef = []
    c0 = k.vr(2, "coef0")
    k.I("v_mov_b32 {0}, 1.0", c0.x)
    k.I("v_cndmask_b32 {0}, 0, 1.0, vcc", c0.y)
    coef.append(c0)
    for n1 in range(1, 8):
        f = k.vr(1)
        k.I("v_mul_f32 {0}, 0x%08x, {1}" % f2u(n1 / 8.0), f, qf)
        cc = k.vr(2, f"coef{n1}")
        k.I("v_cos_f32 {0}, {1}", cc.x, f)
        k.I("v_sin_f32 {0}, {1}", cc.y, f)
        k.I("v_sub_f32 {0}, 0, {1}", cc.y, cc.y)
        k.I("v_cndmask_b32 {0}, {0}, %s, vcc" % ("1.0" if n1 % 2 == 0 else "-1.0"), cc.y)
        coef.append(cc)
    rf = k.vr(1, "rf"); uf = k.vr(1, "uf")
    k.I("v_cvt_f32_u32 {0}, {1}", rf, r)
    k.I("v_cvt_f32_u32 {0}, {1}", uf, u)
    tw1 = twiddles(k, rf, 8, 640, "tw1_")
    tw2 = twiddles(k, uf, 8, 80, "tw2_")
    k.raw("s_waitcnt lgkmcnt(0)\ns_barrier")
    ldsB = k.vr(1, "ldsB")
    k.I("v_lshlrev_b32 {0}, 2, {1}", ldsB, r)
    xs = []
    for a in range(8):
        acc = k.vr(2, f"s{a}")
        for n1 in range(0, 8, 2):
            pr = k.vr(2, "Lp")
            k.I("ds_read_b32 {0}, {1} offset:%d" % (L_OFF + (n1 * 640 + 80 * a) * 4), pr.x, ldsB)
            k.I("ds_read_b32 {0}, {1} offset:%d" % (L_OFF + ((n1 + 1) * 640 + 80 * a) * 4), pr.y, ldsB)
            k.raw("s_waitcnt lgkmcnt(0)")
            if n1 == 0:
                k.I("v_pk_mul_f32 {0}, {1}, {2} op_sel:[0,0] op_sel_hi:[1,0]", acc, coef[n1], pr)
            else:
                k.I("v_pk_fma_f32 {0}, {1}, {2}, {0} op_sel:[0,0,0] op_sel_hi:[1,0,1]", acc, coef[n1], pr)
            k.I("v_pk_fma_f32 {0}, {1}, {2}, {0} op_sel:[0,1,0] op_sel_hi:[1,1,1]", acc, coef[n1 + 1], pr)
        xs.append(acc)
    y = cp.dft(xs, -1)
    ldsBw = k.vr(1, "ldsBw")
    tq = k.vr(1)
    k.I("v_mul_u32_u24 {0}, %d, {1}" % (8 * P1), tq, q)
    k.I("v_add_u32 {0}, {1}, {2}", ldsBw, tq, r)
    k.I("v_lshlrev_b32 {0}, 3, {0}", ldsBw)
    for m in range(8):
        z = y[m] if m == 0 else cp.mul(y[m], tw1[m], conj=True)
        k.I("ds_write_b64 {0}, {1} offset:%d" % (E1_OFF + m * P1 * 8), ldsBw, z, ndef=0)
    k.raw("s_waitcnt lgkmcnt(0)\ns_barrier")
    ldsC = k.vr(1, "ldsC")
    tq2 = k.vr(1)
    k.I("v_mul_u32_u24 {0}, %d, {1}" % P1, tq2, k1)
    k.I("v_add3_u32 {0}, {1}, {2}, {3}", ldsC, tq, tq2, u)
    k.I("v_lshlrev_b32 {0}, 3, {0}", ldsC)
    xs = []
    for b in range(8):
        v = k.vr(2, f"c{b}")
        k.I("ds_read_b64 {0}, {1} offset:%d" % (E1_OFF + 10 * b * 8), v, ldsC)
        xs.append(v)
    k.raw("s_waitcnt lgkmcnt(0)")
    y = cp.dft(xs, -1)
    ldsCw = k.vr(1, "ldsCw")
    t1 = k.vr(1)
    k.I("v_lshl_add_u32 {0}, {1}, 6, {2}", t1, q, k1)
    k.I("v_mul_u32_u24 {0}, %d, {1}" % P2, t1, t1)
    k.I("v_add_lshl_u32 {0}, {1}, {2}, 3", ldsCw, t1, u)
    for m in range(8):
        z = y[m] if m == 0 else cp.mul(y[m], tw2[m], conj=True)
        k.I("ds_write_b64 {0}, {1} offset:%d" % (E2_OFF + m * 8 * P2 * 8), ldsCw, z, ndef=0)
    k.raw("s_waitcnt lgkmcnt(0)\ns_barrier")
    k.raw(f"""
s_cmp_ge_u32 s16, 4
s_cbranch_scc1 {done}
""")
    ldsD = k.vr(1, "ldsD")
    k.I("v_mul_u32_u24 {0}, %d, v0" % (P2 * 8), ldsD)
    xs = []
    for uu in range(10):
        v = k.vr(2, f"d{uu}")
        k.I("ds_read_b64 {0}, {1} offset:%d" % (E2_OFF + uu * 8), v, ldsD)
        xs.append(v)
    k.raw("s_waitcnt lgkmcnt(0)")
    X = cp.dft(xs, -1)
    vd = k.vr(1, "vd"); vm = k.vr(1, "vm")
    k.I("v_lshlrev_b32 {0}, 3, {1}", vd, lane)
    k.I("v_sub_u32 {0}, 512, {1}", vm, vd)
    wave0 = "L_k1_wave0"
    k.raw(f"""
s_cmp_eq_u32 s16, 0
s_cbranch_scc1 {wave0}
s_lshl_b32 s24, s16, 8
s_add_u32 s24, s24, s2
s_mul_i32 s24, s24, {T_RS}
s_sub_u32 s25, 8, s16
s_lshl_b32 s25, s25, 8
s_add_u32 s25, s25, s2
s_mul_i32 s25, s25, {T_RS}
s_mul_i32 s26, s2, s16
s_sub_u32 s27, 8, s16
s_mul_i32 s27, s2, s27
""")
    twq = k.vr(2, "twq"); tw8q = k.vr(2, "tw8q")
    for tw, s in ((twq, "s26"), (tw8q, "s27")):
        f = k.vr(1)
        k.I("v_cvt_f32_u32 {0}, %s" % s, f)
        k.I("v_mul_f32 {0}, 0x%08x, {0}" % f2u(1.0 / 2048), f)
        k.I("v_cos_f32 {0}, {1}", tw.x, f)
        k.I("v_sin_f32 {0}, {1}", tw.y, f)

    def mul_conjv_conjw(v, w):
        t = cp.mul(v, w)
        return t

    for k3 in range(10):
        if k3 < 5:
            z = cp.mul(X[k3], twq, conj=True)
            k.I("buffer_store_dwordx2 {0}, {1}, s[12:15], s24 offen offset:%d" % (512 * k3), z, vd, ndef=0)
        else:
            z = cp.mul(X[k3], tw8q)
            zc = k.vr(2, "zc")
            k.I("v_pk_mul_f32 {0}, {1}, %s" % sp.pair(1.0, -1.0), zc, z)
            k.I("buffer_store_dwordx2 {0}, {1}, s[12:15], s25 offen offset:%d" % ((576 - 64 * k3) * 8), zc, vm, ndef=0)
    k.raw("v_cmp_eq_u32 vcc, 0, v0\ns_nop 0\ns_and_saveexec_b64 s[28:29], vcc")
    k.items.pop(); k.items.pop(); k.items.pop()
    k.I("v_cmp_eq_u32 vcc, 0, {0}", lane, ndef=0)
    z0 = cp.mul(X[0], tw8q)
    z0c = k.vr(2, "z0c")
    k.I("v_pk_mul_f32 {0}, {1}, %s" % sp.pair(1.0, -1.0), z0c, z0)
    z5 = cp.mul(X[5], twq, conj=True)
    k.raw("s_and_saveexec_b64 s[28:29], vcc")
    k.I("buffer_store_dwordx2 {0}, {1}, s[12:15], s25 offen", z0c, vd, ndef=0)
    k.I("buffer_store_dwordx2 {0}, {1}, s[12:15], s24 offen offset:2560", z5, vd, ndef=0)
    k.raw(f"s_mov_b64 exec, s[28:29]\ns_branch {done}")
    k.label(wave0)
    k.raw(f"""
s_mul_i32 s24, s2, {T_RS}
s_add_u32 s25, s2, 1024
s_mul_i32 s25, s25, {T_RS}
""")
    tw4 = k.vr(2, "tw4")
    f = k.vr(1)
    k.I("v_cvt_f32_u32 {0}, s2", f)
    k.I("v_mul_f32 {0}, 0x%08x, {0}" % f2u(4.0 / 2048), f)
    k.I("v_cos_f32 {0}, {1}", tw4.x, f)
    k.I("v_sin_f32 {0}, {1}", tw4.y, f)
    pa = k.vr(1, "pa")
    k.I("v_sub_u32 {0}, 64, {1}", pa, lane)
    k.I("v_and_b32 {0}, 63, {0}", pa)
    k.I("v_lshlrev_b32 {0}, 2, {0}", pa)
    G = []
    for j in range(5):
        g = k.vr(2, f"G{j}")
        k.I("ds_bpermute_b32 {0}, {1}, {2}", g.x, pa, X[9 - j].x)
        k.I("ds_bpermute_b32 {0}, {1}, {2}", g.y, pa, X[9 - j].y)
        G.append(g)
    k.raw("s_waitcnt lgkmcnt(0)")
    k.I("v_cmp_eq_u32 vcc, 0, {0}", lane, ndef=0)
    Pm = []
    for j in range(5):
        pm = k.vr(2, f"P{j}")
        src0 = X[0] if j == 0 else G[j - 1]
        k.I("v_cndmask_b32 {0}, {1}, {2}, vcc", pm.x, G[j].x, src0.x)
        k.I("v_cndmask_b32 {0}, {1}, {2}, vcc", pm.y, G[j].y, src0.y)
        Pm.append(pm)

    def unpack(Z, Zm):
        half = sp.pair(0.5, 0.5)
        a0 = k.vr(2, "a0")
        k.I("v_pk_add_f32 {0}, {1}, {2} neg_hi:[0,1]", a0, Z, Zm)
        k.I("v_pk_mul_f32 {0}, {0}, %s" % half, a0)
        a4 = k.vr(2, "a4")
        k.I("v_pk_add_f32 {0}, {1}, {2} op_sel:[1,1] op_sel_hi:[0,0] neg_hi:[1,0]", a4, Z, Zm)
        k.I("v_pk_mul_f32 {0}, {0}, %s" % half, a4)
        a4t = cp.mul(a4, tw4, conj=True)
        return a0, a4t
    for k3 in range(5):
        a0, a4 = unpack(X[k3], Pm[k3])
        k.I("buffer_store_dwordx2 {0}, {1}, s[12:15], s24 offen offset:%d" % (512 * k3), a0, vd, ndef=0)
        k.I("buffer_store_dwordx2 {0}, {1}, s[12:15], s25 offen offset:%d" % (512 * k3), a4, vd, ndef=0)
    a0, a4 = unpack(X[5], X[5])
    k.raw("s_and_saveexec_b64 s[28:29], vcc")
    k.I("buffer_store_dwordx2 {0}, {1}, s[12:15], s24 offen offset:2560", a0, vd, ndef=0)
    k.I("buffer_store_dwordx2 {0}, {1}, s[12:15], s25 offen offset:2560", a4, vd, ndef=0)
    k.raw("s_mov_b64 exec, s[28:29]")
    k.label(done)
    k.items[init_pos:init_pos] = sp.init
    lines = k.lines()
    return dict(name=name, lines=lines, grid=256, block=320, lds=LDS_TOTAL, vgpr=k.vgpr_hi, sgpr=102)


if __name__ == "__main__":
    import sys
    from build import assemble_file
    kd = gen_k1()
    print("vgprs", kd["vgpr"], "lines", len(kd["lines"]))
    assemble_file([kd], sys.argv[1] if len(sys.argv) > 1 else "k1.s")
```

```python
from asmlib import Kernel
from cplx import C, SPool, f2u
from layout import *

N_FFT_WG = 168
LDS_STRIDE = 2048 + 128
LDS_XCH = 16 * LDS_STRIDE


def twiddles(k, idxf, n, den, cp):
    tw = [None]
    for m in range(1, n):
        f = k.vr(1, "twf")
        k.I("v_mul_f32 {0}, 0x%08x, {1}" % f2u(m / den), f, idxf)
        t = k.vr(2, f"tw{m}")
        k.I("v_cos_f32 {0}, {1}", t.x, f)
        k.I("v_sin_f32 {0}, {1}", t.y, f)
        tw.append(t)
    return tw


def gen_transpose(k, done):
    R = k.raw
    k.label("L_k2_tr")
    R(f"""
s_cmp_ge_u32 s2, 256
s_cbranch_scc1 {done}
s_load_dwordx2 s[4:5], s[0:1], {KA_WS}
s_load_dwordx2 s[6:7], s[0:1], {KA_W1}
s_load_dwordx2 s[8:9], s[0:1], {KA_W2}
s_sub_u32 s3, s2, {N_FFT_WG}
v_lshrrev_b32 v1, 2, v0
v_and_b32 v2, 3, v0
v_lshlrev_b32 v3, 5, v2
v_mul_u32_u24 v4, {16 * 132}, v2
v_lshl_add_u32 v4, v1, 1, v4
v_mul_u32_u24 v5, 132, v1
v_add_u32 v5, v5, v3
s_waitcnt lgkmcnt(0)
s_mov_b32 s12, s6
s_mov_b32 s13, s7
s_mov_b32 s14, {640 * 1728 * 2}
s_mov_b32 s15, 0x00020000
s_mov_b32 s16, s8
s_mov_b32 s17, s9
s_mov_b32 s18, {640 * 1728 * 2}
s_mov_b32 s19, 0x00020000
s_add_u32 s20, s4, {W1T_OFF}
s_addc_u32 s21, s5, 0
s_mov_b32 s22, {W1T_SIZE}
s_mov_b32 s23, 0x00020000
s_add_u32 s24, s4, {W2T_OFF}
s_addc_u32 s25, s5, 0
s_mov_b32 s26, {W2T_SIZE}
s_mov_b32 s27, 0x00020000
L_k2_trloop:
s_cmp_lt_u32 s3, 270
s_cbranch_scc0 L_k2_trB
s_mul_i32 s30, s3, 2428
s_lshr_b32 s30, s30, 16
s_mul_i32 s31, s30, 27
s_sub_u32 s31, s3, s31
s_mul_i32 s32, s30, {64 * 3456}
s_lshl_b32 s33, s31, 7
s_add_u32 s32, s32, s33
s_mul_i32 s33, s31, {64 * 1280}
s_lshl_b32 s34, s30, 7
s_add_u32 s33, s33, s34
v_mul_u32_u24 v6, 3456, v1
v_add_u32 v6, v6, v3
v_mul_u32_u24 v7, 1280, v1
v_add_u32 v7, v7, v3
buffer_load_dwordx4 v[8:11], v6, s[12:15], s32 offen
buffer_load_dwordx4 v[12:15], v6, s[12:15], s32 offen offset:16
s_mov_b64 s[36:37], s[20:21]
s_mov_b64 s[38:39], s[22:23]
s_branch L_k2_trJ
L_k2_trB:
s_sub_u32 s35, s3, 270
s_mul_i32 s30, s35, 6554
s_lshr_b32 s30, s30, 16
s_mul_i32 s31, s30, 10
s_sub_u32 s31, s35, s31
s_mul_i32 s32, s30, {64 * 1280}
s_lshl_b32 s33, s31, 7
s_add_u32 s32, s32, s33
s_mul_i32 s33, s31, {64 * 3456}
s_lshl_b32 s34, s30, 7
s_add_u32 s33, s33, s34
v_mul_u32_u24 v6, 1280, v1
v_add_u32 v6, v6, v3
v_mul_u32_u24 v7, 3456, v1
v_add_u32 v7, v7, v3
buffer_load_dwordx4 v[8:11], v6, s[16:19], s32 offen
buffer_load_dwordx4 v[12:15], v6, s[16:19], s32 offen offset:16
s_mov_b64 s[36:37], s[24:25]
s_mov_b64 s[38:39], s[26:27]
L_k2_trJ:
s_waitcnt vmcnt(0)
""")
    for e in range(16):
        op = "ds_write_b16_d16_hi" if e % 2 else "ds_write_b16"
        R(f"{op} v4, v{8 + e // 2} offset:{e * 132}")
    R("s_waitcnt lgkmcnt(0)\ns_barrier")
    for i in range(8):
        R(f"ds_read_b32 v{16 + i}, v5 offset:{4 * i}")
    R(f"""
s_waitcnt lgkmcnt(0)
buffer_store_dwordx4 v[16:19], v7, s[36:39], s33 offen
buffer_store_dwordx4 v[20:23], v7, s[36:39], s33 offen offset:16
s_barrier
s_add_u32 s3, s3, 88
s_cmp_lt_u32 s3, 540
s_cbranch_scc1 L_k2_trloop
""")


def gen_k2(name="k2_kernel"):
    k = Kernel(name, first_vgpr=1)
    sp = SPool(60, 101)
    cp = C(k, sp)
    done = "L_k2_done"
    k.raw(f"""
s_cmp_ge_u32 s2, {N_FFT_WG}
s_cbranch_scc1 L_k2_tr
s_load_dwordx2 s[4:5], s[0:1], {KA_WS}
s_load_dwordx2 s[6:7], s[0:1], {KA_WR}
s_load_dwordx2 s[8:9], s[0:1], {KA_WI}
s_mul_i32 s56, s2, 3121
s_lshr_b32 s56, s56, 16
s_mul_i32 s57, s56, 21
s_sub_u32 s57, s2, s57
""")
    init_pos = len(k.items)
    k.raw("""
s_mul_i32 s24, s56, %d
s_mul_i32 s58, s57, 128
s_add_u32 s24, s24, s58
""" % (256 * T_RS))
    for a in range(1, 16):
        k.raw(f"s_add_u32 s{24+a}, s{23+a}, {16*T_RS}")
    k.raw("""
s_mul_i32 s40, s56, 642
s_lshl_b32 s58, s57, 5
s_add_u32 s40, s40, s58
""")
    for a in range(1, 16):
        k.raw(f"s_add_u32 s{40+a}, s{39+a}, {128*642}")
    k.raw(f"""
s_waitcnt lgkmcnt(0)
s_mov_b32 s12, s4
s_mov_b32 s13, s5
s_mov_b32 s14, {T_SIZE}
s_mov_b32 s15, 0x00020000
s_mov_b32 s16, s6
s_mov_b32 s17, s7
s_mov_b32 s18, {2048*642}
s_mov_b32 s19, 0x00020000
s_mov_b32 s20, s8
s_mov_b32 s21, s9
s_mov_b32 s22, {2048*642}
s_mov_b32 s23, 0x00020000
""")
    c = k.vr(1, "c"); r = k.vr(1, "r")
    k.I("v_and_b32 {0}, 15, v0", c)
    k.I("v_lshrrev_b32 {0}, 4, v0", r)
    voff = k.vr(1, "voffT")
    tmp = k.vr(1)
    k.I("v_mul_u32_u24 {0}, %d, {1}" % T_RS, tmp, r)
    k.I("v_lshl_add_u32 {0}, {1}, 3, {2}", voff, c, tmp)
    voffw = k.vr(1, "voffW")
    tmp2 = k.vr(1)
    k.I("v_mul_u32_u24 {0}, %d, {1}" % (8 * 642), tmp2, r)
    k.I("v_lshl_add_u32 {0}, {1}, 1, {2}", voffw, c, tmp2)
    xs = []
    for a in range(16):
        v = k.vr(2, f"x{a}")
        k.I("buffer_load_dwordx2 {0}, {1}, s[12:15], s%d offen" % (24 + a), v, voff)
        xs.append(v)
    ws = []
    for a in range(16):
        v = k.vr(2, f"w{a}")
        k.I("buffer_load_ushort {0}, {1}, s[16:19], s%d offen" % (40 + a), v.x, voffw)
        k.I("buffer_load_ushort {0}, {1}, s[20:23], s%d offen" % (40 + a), v.y, voffw)
        ws.append(v)
    rf = k.vr(1, "rf")
    k.I("v_cvt_f32_u32 {0}, {1}", rf, r)
    tw = twiddles(k, rf, 16, 256, cp)
    ldsw = k.vr(1, "ldsw"); ldsr = k.vr(1, "ldsr")
    k.I("v_lshlrev_b32 {0}, 3, v0", ldsw)
    tmp3 = k.vr(1)
    k.I("v_mul_u32_u24 {0}, %d, {1}" % LDS_STRIDE, tmp3, r)
    k.I("v_lshl_add_u32 {0}, {1}, 3, {2}", ldsr, c, tmp3)
    k.raw("s_waitcnt vmcnt(32)")
    y = cp.dft(xs, -1)
    for m in range(16):
        z = y[m] if m == 0 else cp.mul(y[m], tw[m], conj=True)
        k.I("ds_write_b64 {0}, {1} offset:%d" % (m * LDS_STRIDE), ldsw, z, ndef=0)
    k.raw("s_waitcnt lgkmcnt(0)\ns_barrier")
    xs = []
    for rr in range(16):
        v = k.vr(2, f"e{rr}")
        k.I("ds_read_b64 {0}, {1} offset:%d" % (rr * 128), v, ldsr)
        xs.append(v)
    k.raw("s_waitcnt lgkmcnt(0)")
    X = cp.dft(xs, -1)
    k.raw("s_waitcnt vmcnt(0)")
    Y = []
    for k2 in range(16):
        w = ws[k2]
        k.I("v_lshlrev_b32 {0}, 16, {1}", w.x, w.x)
        k.I("v_lshlrev_b32 {0}, 16, {1}", w.y, w.y)
        Y.append(cp.mul(X[k2], w))
    ldsw2 = k.vr(1, "ldsw2"); ldsr2 = k.vr(1, "ldsr2")
    k.I("v_add_u32 {0}, %d, {1}" % LDS_XCH, ldsw2, ldsw)
    k.I("v_add_u32 {0}, %d, {1}" % LDS_XCH, ldsr2, ldsr)
    y = cp.dft(Y, +1)
    for m in range(16):
        z = y[m] if m == 0 else cp.mul(y[m], tw[m])
        k.I("ds_write_b64 {0}, {1} offset:%d" % (m * LDS_STRIDE), ldsw2, z, ndef=0)
    k.raw("s_waitcnt lgkmcnt(0)\ns_barrier")
    xs = []
    for rr in range(16):
        v = k.vr(2, f"f{rr}")
        k.I("ds_read_b64 {0}, {1} offset:%d" % (rr * 128), v, ldsr2)
        xs.append(v)
    k.raw("s_waitcnt lgkmcnt(0)")
    U = cp.dft(xs, +1)
    for a in range(16):
        k.I("buffer_store_dwordx2 {0}, {1}, s[12:15], s%d offen" % (24 + a), U[a], voff, ndef=0)
    k.raw(f"s_branch {done}")
    gen_transpose(k, done)
    k.label(done)
    k.items[init_pos:init_pos] = sp.init
    lines = k.lines()
    return dict(name=name, lines=lines, grid=256, block=256, lds=2 * LDS_XCH, vgpr=k.vgpr_hi, sgpr=102)


if __name__ == "__main__":
    import sys
    from build import assemble_file
    kd = gen_k2()
    print("vgprs", kd["vgpr"], "lines", len(kd["lines"]))
    assemble_file([kd], sys.argv[1] if len(sys.argv) > 1 else "k2.s")
```

```python
import math
from asmlib import Kernel
from cplx import C, SPool, f2u
from layout import *
from common import *

S1 = 72
PC = 9
E1_OFF = 0
E1_SIZE = 4 * 10 * S1 * 8
E2_OFF = E1_OFF + E1_SIZE
E2_SIZE = 4 * 80 * PC * 8
F_OFF = E2_OFF + E2_SIZE
F_SIZE = 4 * 640 * 8
LDS_TOTAL = F_OFF + F_SIZE
SCALE = 1.0 / (2048 * 640)


def gen_k3(name="k3_kernel"):
    k = Kernel(name, first_vgpr=1)
    sp = SPool(40, 101)
    cp = C(k, sp)
    done = "L_k3_done"
    k.raw(f"""
s_cmp_ge_u32 s2, 256
s_cbranch_scc1 {done}
s_load_dwordx2 s[4:5], s[0:1], {KA_WS}
s_load_dwordx2 s[6:7], s[0:1], {KA_X}
v_readfirstlane_b32 s24, v0
s_lshr_b32 s24, s24, 6
""")
    init_pos = len(k.items)
    k.raw(f"""
s_waitcnt lgkmcnt(0)
s_mov_b32 s8, s4
s_mov_b32 s9, s5
s_mov_b32 s10, {T_SIZE}
s_mov_b32 s11, 0x00020000
s_mov_b32 s12, s6
s_mov_b32 s13, s7
s_mov_b32 s14, {2048*1280}
s_mov_b32 s15, 0x00020000
s_add_u32 s16, s4, {H_OFF}
s_addc_u32 s17, s5, 0
s_mov_b32 s18, {H_SIZE}
s_mov_b32 s19, 0x00020000
s_add_u32 s20, s4, {LN2_OFF}
s_addc_u32 s21, s5, 0
s_mov_b32 s22, {LN2_SIZE}
s_mov_b32 s23, 0x00020000
""")
    lane = k.vr(1, "lane")
    k.I("v_and_b32 {0}, 63, v0", lane)
    vd = k.vr(1, "vd"); vm = k.vr(1, "vm")
    k.I("v_lshlrev_b32 {0}, 3, {1}", vd, lane)
    k.I("v_sub_u32 {0}, 512, {1}", vm, vd)
    skipA = "L_k3_skipA"; wave0 = "L_k3_wave0"; joinA = "L_k3_joinA"
    k.raw(f"""
s_cmp_ge_u32 s24, 4
s_cbranch_scc1 {skipA}
""")
    cf = k.vr(1, "cf")
    k.I("v_cvt_f32_u32 {0}, {1}", cf, lane)
    twA = twiddles(k, cf, 10, 640, "twA_")
    k.I("v_cmp_eq_u32 vcc, 0, {0}", lane, ndef=0)
    k.raw(f"""
s_mov_b64 s[30:31], vcc
s_cmp_eq_u32 s24, 0
s_cbranch_scc1 {wave0}
s_lshl_b32 s25, s24, 8
s_add_u32 s25, s25, s2
s_mul_i32 s25, s25, {T_RS}
s_sub_u32 s26, 8, s24
s_lshl_b32 s26, s26, 8
s_add_u32 s26, s26, s2
s_mul_i32 s26, s26, {T_RS}
s_mul_i32 s27, s2, s24
s_sub_u32 s28, 8, s24
s_mul_i32 s28, s2, s28
""")
    E = [k.vr(2, f"E{i}") for i in range(10)]
    raw = []
    for i in range(10):
        v = k.vr(2, f"u{i}")
        if i < 5:
            k.I("buffer_load_dwordx2 {0}, {1}, s[8:11], s25 offen offset:%d" % (512 * i), v, vd)
        else:
            k.I("buffer_load_dwordx2 {0}, {1}, s[8:11], s26 offen offset:%d" % ((576 - 64 * i) * 8), v, vm)
        raw.append(v)
    zero = k.vr(1, "zero")
    k.I("v_mov_b32 {0}, 0", zero)
    ex0 = k.vr(2, "ex0"); ex5 = k.vr(2, "ex5")
    k.I("buffer_load_dwordx2 {0}, {1}, s[8:11], s26 offen", ex0, zero)
    k.I("buffer_load_dwordx2 {0}, {1}, s[8:11], s25 offen offset:2560", ex5, zero)
    twq = k.vr(2, "twq"); tw8q = k.vr(2, "tw8q")
    for tw, s in ((twq, "s27"), (tw8q, "s28")):
        f = k.vr(1)
        k.I("v_cvt_f32_u32 {0}, %s" % s, f)
        k.I("v_mul_f32 {0}, 0x%08x, {0}" % f2u(1.0 / 2048), f)
        k.I("v_cos_f32 {0}, {1}", tw.x, f)
        k.I("v_sin_f32 {0}, {1}", tw.y, f)
    k.raw("s_waitcnt vmcnt(0)")
    conjp = sp.pair(1.0, -1.0)
    for i in range(10):
        if i < 5:
            cp.mul(raw[i], twq, out=E[i])
        else:
            t = cp.mul(raw[i], tw8q)
            k.I("v_pk_mul_f32 {0}, {1}, %s" % conjp, E[i], t)
    a0 = cp.mul(ex0, tw8q)
    k.I("v_pk_mul_f32 {0}, {0}, %s" % conjp, a0)
    a5 = cp.mul(ex5, twq)
    half = sp.pair(0.5, 0.5)
    for (Ei, alt) in ((E[0], a0), (E[5], a5)):
        k.I("v_pk_add_f32 {0}, {0}, {1}", alt, Ei)
        k.I("v_pk_mul_f32 {0}, {0}, %s" % half, alt)
        k.I("v_cndmask_b32 {0}, {0}, {1}, s[30:31]", Ei.x, alt.x)
        k.I("v_cndmask_b32 {0}, {0}, {1}, s[30:31]", Ei.y, alt.y)
    k.raw(f"s_branch {joinA}")
    k.label(wave0)
    k.raw(f"""
s_mul_i32 s25, s2, {T_RS}
s_add_u32 s26, s2, 1024
s_mul_i32 s26, s26, {T_RS}
""")
    raw0 = []; raw4 = []
    for i in range(10):
        v0_ = k.vr(2, f"p{i}"); v4_ = k.vr(2, f"q{i}")
        if i < 5:
            k.I("buffer_load_dwordx2 {0}, {1}, s[8:11], s25 offen offset:%d" % (512 * i), v0_, vd)
            k.I("buffer_load_dwordx2 {0}, {1}, s[8:11], s26 offen offset:%d" % (512 * i), v4_, vd)
        else:
            k.I("buffer_load_dwordx2 {0}, {1}, s[8:11], s25 offen offset:%d" % ((576 - 64 * i) * 8), v0_, vm)
            k.I("buffer_load_dwordx2 {0}, {1}, s[8:11], s26 offen offset:%d" % ((576 - 64 * i) * 8), v4_, vm)
        raw0.append(v0_); raw4.append(v4_)
    tw4 = k.vr(2, "tw4")
    f = k.vr(1)
    k.I("v_cvt_f32_u32 {0}, s2", f)
    k.I("v_mul_f32 {0}, 0x%08x, {0}" % f2u(4.0 / 2048), f)
    k.I("v_cos_f32 {0}, {1}", tw4.x, f)
    k.I("v_sin_f32 {0}, {1}", tw4.y, f)
    k.raw("s_waitcnt vmcnt(0)")
    for i in range(10):
        V0 = raw0[i]
        V4 = cp.mul(raw4[i], tw4)
        if i in (0, 5):
            k.I("v_cndmask_b32 {0}, {0}, 0, s[30:31]", V0.y)
            k.I("v_cndmask_b32 {0}, {0}, 0, s[30:31]", V4.y)
        if i < 5:
            cp.add_i(V0, V4, out=E[i])
        else:
            k.I("v_pk_add_f32 {0}, {1}, {2} op_sel:[0,1] op_sel_hi:[1,0] neg_hi:[1,0]", E[i], V0, V4)
    k.label(joinA)
    G = cp.dft(E, +1)
    ldsAw = k.vr(1, "ldsAw")
    k.raw("s_mul_i32 s29, s24, %d" % (10 * S1 * 8))
    k.I("v_add_u32 {0}, s29, {1}", ldsAw, vd)
    for f_ in range(10):
        z = G[f_] if f_ == 0 else cp.mul(G[f_], twA[f_])
        k.I("ds_write_b64 {0}, {1} offset:%d" % (E1_OFF + f_ * S1 * 8), ldsAw, z, ndef=0)
    k.label(skipA)
    q = k.vr(1, "q"); r = k.vr(1, "r")
    k.I("v_mul_u32_u24 {0}, 205, v0", q)
    k.I("v_lshrrev_b32 {0}, 14, {0}", q)
    t80 = k.vr(1)
    k.I("v_mul_u32_u24 {0}, 80, {1}", t80, q)
    k.I("v_sub_u32 {0}, v0, {1}", r, t80)
    fB = k.vr(1, "fB"); c0 = k.vr(1, "c0")
    k.I("v_lshrrev_b32 {0}, 3, {1}", fB, r)
    k.I("v_and_b32 {0}, 7, {1}", c0, r)
    e0 = k.vr(1, "e0"); fC = k.vr(1, "fC")
    k.I("v_mul_u32_u24 {0}, 205, {1}", e0, r)
    k.I("v_lshrrev_b32 {0}, 11, {0}", e0)
    t10 = k.vr(1)
    k.I("v_mul_u32_u24 {0}, 10, {1}", t10, e0)
    k.I("v_sub_u32 {0}, {1}, {2}", fC, r, t10)
    c0f = k.vr(1, "c0f")
    k.I("v_cvt_f32_u32 {0}, {1}", c0f, c0)
    twB = twiddles(k, c0f, 8, 64, "twB_")
    k.raw("s_waitcnt lgkmcnt(0)\ns_barrier")
    ldsB = k.vr(1, "ldsB")
    tb = k.vr(1)
    k.I("v_mul_u32_u24 {0}, 10, {1}", tb, q)
    k.I("v_add_u32 {0}, {0}, {1}", tb, fB)
    k.I("v_mul_u32_u24 {0}, %d, {1}" % S1, tb, tb)
    k.I("v_add_lshl_u32 {0}, {1}, {2}, 3", ldsB, tb, c0)
    xs = []
    for c1 in range(8):
        v = k.vr(2, f"b{c1}")
        k.I("ds_read_b64 {0}, {1} offset:%d" % (E1_OFF + c1 * 64), v, ldsB)
        xs.append(v)
    k.raw("s_waitcnt lgkmcnt(0)")
    y = cp.dft(xs, +1)
    ldsBw = k.vr(1, "ldsBw")
    k.I("v_add_u32 {0}, {1}, {2}", ldsBw, t80, fB)
    k.I("v_mul_u32_u24 {0}, %d, {1}" % PC, ldsBw, ldsBw)
    k.I("v_add_lshl_u32 {0}, {0}, {1}, 3", ldsBw, c0)
    for m in range(8):
        z = y[m] if m == 0 else cp.mul(y[m], twB[m])
        k.I("ds_write_b64 {0}, {1} offset:%d" % (E2_OFF + m * 10 * PC * 8), ldsBw, z, ndef=0)
    k.raw("s_waitcnt lgkmcnt(0)\ns_barrier")
    ldsC = k.vr(1, "ldsC")
    k.I("v_mul_u32_u24 {0}, %d, v0" % (PC * 8), ldsC)
    xs = []
    for cc in range(8):
        v = k.vr(2, f"c{cc}")
        k.I("ds_read_b64 {0}, {1} offset:%d" % (E2_OFF + cc * 8), v, ldsC)
        xs.append(v)
    k.raw("s_waitcnt lgkmcnt(0)")
    y = cp.dft(xs, +1)
    ldsCw = k.vr(1, "ldsCw")
    tc = k.vr(1)
    k.I("v_mul_u32_u24 {0}, 640, {1}", tc, q)
    k.I("v_add_lshl_u32 {0}, {1}, {2}, 3", ldsCw, tc, r)
    for e1 in range(8):
        k.I("ds_write_b64 {0}, {1} offset:%d" % (F_OFF + e1 * 80 * 8), ldsCw, y[e1], ndef=0)
    k.raw("s_waitcnt lgkmcnt(0)\ns_barrier")
    k.raw(f"""
s_cmp_ge_u32 s24, 4
s_cbranch_scc1 {done}
s_lshl_b32 s25, s24, 9
s_add_u32 s25, s25, s2
s_mul_i32 s25, s25, 1280
s_add_u32 s26, s25, {256*1280}
""")
    voff = k.vr(1, "voffx")
    k.I("v_lshlrev_b32 {0}, 2, {1}", voff, lane)
    xraw = [[], []]
    for row in range(2):
        for i in range(5):
            v = k.vr(1, f"xr{row}_{i}")
            k.I("buffer_load_dword {0}, {1}, s[12:15], s%d offen offset:%d" % (25 + row, 256 * i), v, voff)
            xraw[row].append(v)
    n1f = k.vr(2, "n1f")
    k.raw("s_lshl_b32 s27, s24, 1")
    k.I("v_cvt_f32_u32 {0}, s27", n1f.x)
    k.I("v_add_f32 {0}, 1.0, {1}", n1f.y, n1f.x)
    coefC = [None]; coefS = [None]
    for qq in range(1, 4):
        cC = k.vr(2, f"cC{qq}"); cS = k.vr(2, f"cS{qq}")
        for h in range(2):
            f = k.vr(1)
            k.I("v_mul_f32 {0}, 0x%08x, {1}" % f2u(qq / 8.0), f, n1f[h])
            k.I("v_cos_f32 {0}, {1}", cC[h], f)
            k.I("v_sin_f32 {0}, {1}", cS[h], f)
            k.I("v_mul_f32 {0}, 0x%08x, {0}" % f2u(2 * SCALE), cC[h])
            k.I("v_mul_f32 {0}, 0x%08x, {0}" % f2u(-2 * SCALE), cS[h])
        coefC.append(cC); coefS.append(cS)
    cA = sp.pair(SCALE, SCALE); cB = sp.pair(SCALE, -SCALE)
    ldsD = k.vr(1, "ldsD")
    k.I("v_lshlrev_b32 {0}, 4, {1}", ldsD, lane)
    k.I("v_add_u32 {0}, %d, {0}" % F_OFF, ldsD)
    ys = []
    for i in range(5):
        av = []
        for qq in range(4):
            v = k.vr(4, f"F{qq}")
            k.I("ds_read_b128 {0}, {1} offset:%d" % ((qq * 640 + 128 * i) * 8), v, ldsD)
            av.append(v)
        k.raw("s_waitcnt lgkmcnt(0)")
        for h in range(2):
            acc = k.vr(2, f"y{i}_{h}")
            a0 = av[0][2 * h:2 * h + 2]
            k.I("v_pk_mul_f32 {0}, {1}, %s op_sel:[0,0] op_sel_hi:[0,1]" % cA, acc, a0)
            k.I("v_pk_fma_f32 {0}, {1}, %s, {0} op_sel:[1,0,0] op_sel_hi:[1,1,1]" % cB, acc, a0)
            for qq in range(1, 4):
                aq = av[qq][2 * h:2 * h + 2]
                k.I("v_pk_fma_f32 {0}, {1}, {2}, {0} op_sel:[0,0,0] op_sel_hi:[0,1,1]", acc, aq, coefC[qq])
                k.I("v_pk_fma_f32 {0}, {1}, {2}, {0} op_sel:[1,0,0] op_sel_hi:[1,1,1]", acc, aq, coefS[qq])
            ys.append(acc)
    k.raw("s_waitcnt vmcnt(0)")
    rows = [[], []]
    for row in range(2):
        for i in range(5):
            p = k.vr(2, f"h{row}_{i}")
            ya = ys[2 * i][row]; yb = ys[2 * i + 1][row]
            yp = k.vr(1, "yp")
            k.I("v_cvt_pk_bf16_f32 {0}, {1}, {2}", yp, ya, yb)
            tlo = k.vr(1); thi = k.vr(1)
            k.I("v_lshlrev_b32 {0}, 16, {1}", tlo, yp)
            k.I("v_and_b32 {0}, 0xffff0000, {1}", thi, yp)
            xl = k.vr(1); xh = k.vr(1)
            k.I("v_lshlrev_b32 {0}, 16, {1}", xl, xraw[row][i])
            k.I("v_and_b32 {0}, 0xffff0000, {1}", xh, xraw[row][i])
            k.I("v_add_f32 {0}, {1}, {2}", p.x, xl, tlo)
            k.I("v_add_f32 {0}, {1}, {2}", p.y, xh, thi)
            hp = k.vr(1, "hp")
            k.I("v_cvt_pk_bf16_f32 {0}, {1}, {2}", hp, p.x, p.y)
            k.I("buffer_store_dword {0}, {1}, s[16:19], s%d offen offset:%d" % (25 + row, 256 * i), hp, voff, ndef=0)
            k.I("v_lshlrev_b32 {0}, 16, {1}", p.x, hp)
            k.I("v_and_b32 {0}, 0xffff0000, {1}", p.y, hp)
            rows[row] += [p.x, p.y]
    layernorm_rows(k, rows, ["s28", "s29"])
    layernorm_rows(k, rows, ["s28", "s29"])
    for row in range(2):
        for i in range(5):
            lp = k.vr(1, "lp")
            k.I("v_cvt_pk_bf16_f32 {0}, {1}, {2}", lp, rows[row][2 * i], rows[row][2 * i + 1])
            k.I("buffer_store_dword {0}, {1}, s[20:23], s%d offen offset:%d" % (25 + row, 256 * i), lp, voff, ndef=0)
    k.label(done)
    k.items[init_pos:init_pos] = sp.init
    lines = k.lines()
    return dict(name=name, lines=lines, grid=256, block=320, lds=LDS_TOTAL, vgpr=k.vgpr_hi, sgpr=102)


if __name__ == "__main__":
    import sys
    from build import assemble_file
    kd = gen_k3()
    print("vgprs", kd["vgpr"], "lines", len(kd["lines"]))
    assemble_file([kd], sys.argv[1] if len(sys.argv) > 1 else "k3.s")
```

```python
from asmlib import Kernel
from cplx import f2u
from layout import *

RS = 640 * 2
HS = 1728 * 2
D = 4
STG = 30 * 1024
LDS_TOTAL = D * STG
NST = 10
ACC = 16
FR = [72, 108]


def acc(mb, nb):
    b = ACC + (mb * 7 + nb) * 4
    return "v[%d:%d]" % (b, b + 3)


def gen_k4(name="k4_kernel"):
    k = Kernel(name, first_vgpr=1)
    R = k.raw
    done = "L_k4_done"
    R(f"""
s_cmp_ge_u32 s2, 256
s_cbranch_scc1 {done}
s_load_dwordx2 s[4:5], s[0:1], {KA_WS}
s_load_dwordx2 s[6:7], s[0:1], {KA_B1}
v_readfirstlane_b32 s32, v0
s_lshr_b32 s32, s32, 6
s_and_b32 s45, s2, 7
s_lshr_b32 s33, s45, 1
s_lshl_b32 s33, s33, 2
s_lshr_b32 s46, s2, 6
s_add_u32 s33, s33, s46
s_lshl_b32 s33, s33, 7
s_and_b32 s34, s45, 1
s_lshl_b32 s34, s34, 3
s_lshr_b32 s46, s2, 3
s_and_b32 s46, s46, 7
s_add_u32 s34, s34, s46
s_mul_i32 s34, s34, 108
s_min_u32 s34, s34, 1616
s_lshl_b32 s35, s32, 10
""")
    for i in range(4):
        R(f"""
s_lshl_b32 s46, s32, 3
s_add_u32 s46, s46, {32 * i}
s_add_u32 s47, s46, s33
s_mul_i32 s{36 + i}, s47, {RS}
s_add_u32 s47, s46, s34
s_mul_i32 s{40 + i}, s47, {RS}
""")
    R(f"""
s_waitcnt lgkmcnt(0)
s_add_u32 s12, s4, {LN2_OFF}
s_addc_u32 s13, s5, 0
s_mov_b32 s14, {LN2_SIZE}
s_mov_b32 s15, 0x00020000
s_add_u32 s16, s4, {W1T_OFF}
s_addc_u32 s17, s5, 0
s_mov_b32 s18, {W1T_SIZE}
s_mov_b32 s19, 0x00020000
s_add_u32 s20, s4, {HID_OFF}
s_addc_u32 s21, s5, 0
s_mov_b32 s22, {HID_SIZE}
s_mov_b32 s23, 0x00020000
s_mov_b32 s24, s6
s_mov_b32 s25, s7
s_mov_b32 s26, {1728 * 2}
s_mov_b32 s27, 0x00020000
v_and_b32 v1, 63, v0
s_and_b32 s46, s32, 1
s_lshl_b32 s46, s46, 2
""")
    R(f"""
v_lshrrev_b32 v4, 3, v1
v_and_b32 v5, 7, v1
v_lshrrev_b32 v6, 1, v4
v_xor_b32 v5, v5, v6
v_xor_b32 v5, s46, v5
v_mul_u32_u24 v2, {RS}, v4
v_lshlrev_b32 v6, 4, v5
v_add_u32 v2, v2, v6
""")
    R(f"""
v_and_b32 v4, 15, v1
v_lshrrev_b32 v5, 4, v1
v_lshrrev_b32 v6, 1, v4
v_xor_b32 v5, v5, v6
v_lshlrev_b32 v6, 4, v5
v_lshl_add_u32 v3, v4, 7, v6
v_xor_b32 v5, 4, v5
v_lshlrev_b32 v6, 4, v5
v_lshl_add_u32 v14, v4, 7, v6
s_lshl_b32 s46, s32, 12
v_add_u32 v8, s46, v3
v_add_u32 v9, s46, v14
""")
    for i in range(56):
        R(f"v_mov_b32 v{ACC + i}, 0")

    def dma(stage, nun):
        slot = stage % D
        R(f"v_add_u32 v7, {stage * 128}, v2" if stage else "v_mov_b32 v7, v2")
        for i in range(nun):
            if i < 4:
                R(f"s_add_u32 m0, s35, {slot * STG + i * 4096}")
                R(f"buffer_load_dwordx4 v7, s[12:15], s{36 + i} offen lds")
            else:
                R(f"s_add_u32 m0, s35, {slot * STG + 16384 + (i - 4) * 4096}")
                R(f"buffer_load_dwordx4 v7, s[16:19], s{40 + i - 4} offen lds")

    def reads(h):
        slot = (h // 2) % D
        fb = FR[h % 2]
        R(f"v_add_u32 v10, {slot * STG}, {'v14' if h % 2 else 'v3'}")
        R(f"v_add_u32 v11, {slot * STG}, {'v9' if h % 2 else 'v8'}")
        for mb in range(2):
            R(f"ds_read_b128 v[{fb + 28 + 4 * mb}:{fb + 28 + 4 * mb + 3}], v11 offset:{mb * 2048}")
        for nb in range(7):
            R(f"ds_read_b128 v[{fb + 4 * nb}:{fb + 4 * nb + 3}], v10 offset:{16384 + nb * 2048}")

    def mfmas(h):
        fb = FR[h % 2]
        for nb in range(7):
            for mb in range(2):
                R(f"v_mfma_f32_16x16x32_bf16 {acc(mb, nb)}, v[{fb + 4 * nb}:{fb + 4 * nb + 3}], v[{fb + 28 + 4 * mb}:{fb + 28 + 4 * mb + 3}], {acc(mb, nb)}")

    def mainloop(nun):
        n = NST
        for t in range(D):
            dma(t, nun)
        issued = D
        R(f"s_waitcnt vmcnt({(issued - 1) * nun})\ns_barrier")
        reads(0)
        for t in range(n):
            reads(2 * t + 1)
            R("s_waitcnt lgkmcnt(9)")
            mfmas(2 * t)
            if t + 1 < n:
                R(f"s_waitcnt vmcnt({(issued - 1 - (t + 1)) * nun}) lgkmcnt(0)\ns_barrier")
                if issued < n:
                    dma(issued, nun); issued += 1
                reads(2 * t + 2)
            else:
                R("s_waitcnt lgkmcnt(0)")
            mfmas(2 * t + 1)

    R("s_cmp_lt_u32 s32, 2\ns_cbranch_scc0 L_k4_varB")
    mainloop(8)
    R("s_branch L_k4_join")
    k.label("L_k4_varB")
    mainloop(7)
    k.label("L_k4_join")
    R(f"""
v_and_b32 v10, 15, v1
v_lshrrev_b32 v11, 4, v1
v_lshlrev_b32 v11, 3, v11
v_mul_u32_u24 v12, {HS}, v10
v_add_u32 v12, v12, v11
s_lshl_b32 s46, s32, 5
s_add_u32 s46, s46, s33
s_mul_i32 s46, s46, {HS}
s_lshl_b32 s47, s34, 1
s_add_u32 s46, s46, s47
s_add_u32 s48, s46, {16 * HS}
""")
    BR = 72
    for nb in range(7):
        R(f"buffer_load_dwordx2 v[{BR + 2 * nb}:{BR + 2 * nb + 1}], v11, s[24:27], s47 offen offset:{nb * 32}")
    R("s_waitcnt vmcnt(0)")
    C1 = f2u(0.7978845608028654 * 2.0 * 1.4426950408889634)
    C2 = f2u(0.044715 * 0.7978845608028654 * 2.0 * 1.4426950408889634)
    T = 108
    for mb in range(2):
        for nb in range(7):
            a = ACC + (mb * 7 + nb) * 4
            o = T + 16 + ((mb * 7 + nb) % 2) * 2
            for i in range(2):
                R(f"""
v_cvt_pk_bf16_f32 v{T}, v{a + 2 * i}, v{a + 2 * i + 1}
v_lshlrev_b32 v{T + 1}, 16, v{T}
v_and_b32 v{T + 2}, 0xffff0000, v{T}
v_lshlrev_b32 v{T + 3}, 16, v{BR + 2 * nb + i}
v_and_b32 v{T + 4}, 0xffff0000, v{BR + 2 * nb + i}
v_add_f32 v{T + 1}, v{T + 1}, v{T + 3}
v_add_f32 v{T + 2}, v{T + 2}, v{T + 4}
v_cvt_pk_bf16_f32 v{T}, v{T + 1}, v{T + 2}
v_lshlrev_b32 v{T + 1}, 16, v{T}
v_and_b32 v{T + 2}, 0xffff0000, v{T}
v_mul_f32 v{T + 3}, v{T + 1}, v{T + 1}
v_mul_f32 v{T + 4}, v{T + 2}, v{T + 2}
v_mov_b32 v{T + 5}, 0x{C1:08x}
v_mov_b32 v{T + 6}, 0x{C1:08x}
v_fmac_f32 v{T + 5}, 0x{C2:08x}, v{T + 3}
v_fmac_f32 v{T + 6}, 0x{C2:08x}, v{T + 4}
v_mul_f32 v{T + 5}, v{T + 5}, v{T + 1}
v_mul_f32 v{T + 6}, v{T + 6}, v{T + 2}
v_exp_f32 v{T + 5}, v{T + 5}
v_exp_f32 v{T + 6}, v{T + 6}
v_add_f32 v{T + 5}, 1.0, v{T + 5}
v_add_f32 v{T + 6}, 1.0, v{T + 6}
v_rcp_f32 v{T + 5}, v{T + 5}
v_rcp_f32 v{T + 6}, v{T + 6}
v_fma_f32 v{T + 5}, -v{T + 5}, v{T + 1}, v{T + 1}
v_fma_f32 v{T + 6}, -v{T + 6}, v{T + 2}, v{T + 2}
v_cvt_pk_bf16_f32 v{o + i}, v{T + 5}, v{T + 6}
""")
            R(f"buffer_store_dwordx2 v[{o}:{o + 1}], v12, s[20:23], s{46 if mb == 0 else 48} offen offset:{nb * 32}")
    k.label(done)
    lines = k.lines()
    return dict(name=name, lines=lines, grid=256, block=256, lds=LDS_TOTAL, vgpr=144, sgpr=102)


if __name__ == "__main__":
    import sys
    from build import assemble_file
    kd = gen_k4()
    print("lines", len(kd["lines"]))
    assemble_file([kd], sys.argv[1] if len(sys.argv) > 1 else "k4.s")
```

```python
from asmlib import Kernel
from layout import *

RS = 1728 * 2
D = 2
STG = 18 * 1024
WBASE = D * STG
LDS_TOTAL = 4 * WBASE
ACC = 16
FR = [96, 132]


def acc(nb, j):
    b = ACC + (nb * 4 + j) * 4
    return "v[%d:%d]" % (b, b + 3)


def gen_k5(name="k5_kernel", no_mfma=False, hot=False, stop=None):
    k = Kernel(name, first_vgpr=1)
    R = k.raw
    done = "L_k5_done"
    R(f"""
s_cmp_ge_u32 s2, 256
s_cbranch_scc1 {done}
s_load_dwordx2 s[4:5], s[0:1], {KA_WS}
s_load_dwordx2 s[6:7], s[0:1], {KA_B2}
s_load_dwordx2 s[8:9], s[0:1], {KA_OUT}
v_readfirstlane_b32 s32, v0
s_lshr_b32 s32, s32, 6
s_and_b32 s33, s2, 7
s_lshl_b32 s33, s33, 2
s_lshr_b32 s45, s2, 6
s_add_u32 s33, s33, s45
s_lshl_b32 s33, s33, 6
s_lshr_b32 s34, s2, 3
s_and_b32 s34, s34, 7
s_mul_i32 s34, s34, 80
s_mul_i32 s35, s32, {WBASE}
s_mul_i32 s45, s32, {7 * 128}
""")
    for j in range(4):
        R(f"""
s_add_u32 s46, s32, {j}
s_and_b32 s46, s46, 3
s_lshl_b32 s46, s46, 4
s_add_u32 s46, s46, s33
s_mul_i32 s46, s46, {RS}
s_add_u32 s{36 + j}, s46, s45
""")
    for nb in range(5):
        R(f"""
s_add_u32 s46, s34, {16 * nb}
s_mul_i32 s46, s46, {RS}
s_add_u32 s{40 + nb}, s46, s45
""")
    if hot:
        for i in range(36, 45):
            R(f"s_and_b32 s{i}, s{i}, 0xffff")
    R(f"""
s_waitcnt lgkmcnt(0)
s_add_u32 s12, s4, {HID_OFF}
s_addc_u32 s13, s5, 0
s_mov_b32 s14, {HID_SIZE}
s_mov_b32 s15, 0x00020000
s_add_u32 s16, s4, {W2T_OFF}
s_addc_u32 s17, s5, 0
s_mov_b32 s18, {W2T_SIZE}
s_mov_b32 s19, 0x00020000
s_add_u32 s20, s4, {H_OFF}
s_addc_u32 s21, s5, 0
s_mov_b32 s22, {H_SIZE}
s_mov_b32 s23, 0x00020000
s_mov_b32 s24, s8
s_mov_b32 s25, s9
s_mov_b32 s26, {2048 * 1280}
s_mov_b32 s27, 0x00020000
s_mov_b32 s28, s6
s_mov_b32 s29, s7
s_mov_b32 s30, 1280
s_mov_b32 s31, 0x00020000
v_and_b32 v1, 63, v0
""")
    R(f"""
v_lshrrev_b32 v4, 3, v1
v_and_b32 v5, 7, v1
v_lshrrev_b32 v6, 1, v4
v_xor_b32 v5, v5, v6
v_mul_u32_u24 v2, {RS}, v4
v_lshlrev_b32 v6, 4, v5
v_add_u32 v2, v2, v6
v_xor_b32 v5, 4, v5
v_lshlrev_b32 v6, 4, v5
v_mul_u32_u24 v13, {RS}, v4
v_add_u32 v13, v13, v6
v_add_u32 v13, {8 * RS}, v13
""")
    R(f"""
v_and_b32 v4, 15, v1
v_lshrrev_b32 v5, 4, v1
v_lshrrev_b32 v6, 1, v4
v_xor_b32 v5, v5, v6
v_lshlrev_b32 v6, 4, v5
v_lshl_add_u32 v3, v4, 7, v6
v_add_u32 v3, s35, v3
v_xor_b32 v5, 4, v5
v_lshlrev_b32 v6, 4, v5
v_lshl_add_u32 v14, v4, 7, v6
v_add_u32 v14, s35, v14
""")
    for i in range(80):
        R(f"v_mov_b32 v{ACC + i}, 0")

    def dma(stage):
        slot = stage % D
        R(f"v_add_u32 v7, {stage * 128}, v2\nv_add_u32 v15, {stage * 128}, v13" if stage else "v_mov_b32 v7, v2\nv_mov_b32 v15, v13")
        for u in range(9):
            so = 40 + u if u < 5 else 36 + (u - 5)
            srd = "s[12:15]" if u >= 5 else "s[16:19]"
            for hf in range(2):
                R(f"s_add_u32 m0, s35, {slot * STG + u * 2048 + hf * 1024}")
                R(f"buffer_load_dwordx4 {'v15' if hf else 'v7'}, {srd}, s{so} offen lds")

    def reads(h):
        slot = (h // 2) % D
        fb = FR[h % 2]
        for u in range(9):
            R(f"ds_read_b128 v[{fb + 4 * u}:{fb + 4 * u + 3}], {'v14' if h % 2 else 'v3'} offset:{slot * STG + u * 2048}")

    def mfmas(h):
        fb = FR[h % 2]
        if no_mfma: return
        for j in range(4):
            for nb in range(5):
                R(f"v_mfma_f32_16x16x32_bf16 {acc(nb, j)}, v[{fb + 4 * nb}:{fb + 4 * nb + 3}], v[{fb + 20 + 4 * j}:{fb + 20 + 4 * j + 3}], {acc(nb, j)}")

    def mainloop(n):
        dma(0); dma(1)
        R("s_waitcnt vmcnt(18)")
        reads(0)
        for t in range(n):
            reads(2 * t + 1)
            R("s_waitcnt lgkmcnt(9)")
            mfmas(2 * t)
            if t + 1 < n:
                R("s_waitcnt vmcnt(0)")
                reads(2 * t + 2)
                R("s_waitcnt lgkmcnt(9)")
                if t + 2 < n:
                    dma(t + 2)
            else:
                R("s_waitcnt lgkmcnt(0)")
            mfmas(2 * t + 1)

    R("s_cmp_lt_u32 s32, 3\ns_cbranch_scc0 L_k5_varB")
    mainloop(7)
    R("s_branch L_k5_join")
    k.label("L_k5_varB")
    mainloop(6)
    k.label("L_k5_join")
    if stop == "loop":
        R(f"s_waitcnt vmcnt(0) lgkmcnt(0)\ns_branch {done}")
    R(f"""
v_lshlrev_b32 v8, 4, v1
v_add_u32 v9, s35, v8
""")
    for j in range(1, 4):
        for nb in range(5):
            R(f"ds_write_b128 v9, {acc(nb, j)} offset:{(j - 1) * 5120 + nb * 1024}")
    R(f"""
v_and_b32 v10, 15, v1
v_lshrrev_b32 v11, 4, v1
v_lshlrev_b32 v11, 3, v11
v_mul_u32_u24 v12, 1280, v10
v_add_u32 v12, v12, v11
s_lshl_b32 s46, s32, 4
s_add_u32 s46, s46, s33
s_mul_i32 s46, s46, 1280
s_lshl_b32 s47, s34, 1
s_add_u32 s46, s46, s47
""")
    HR = 96; BR = 106
    for nb in range(5):
        R(f"buffer_load_dwordx2 v[{HR + 2 * nb}:{HR + 2 * nb + 1}], v12, s[20:23], s46 offen offset:{nb * 32}")
        R(f"buffer_load_dwordx2 v[{BR + 2 * nb}:{BR + 2 * nb + 1}], v11, s[28:31], s47 offen offset:{nb * 32}")
    R("s_waitcnt lgkmcnt(0)\ns_barrier")
    PR = 132
    for j in range(1, 4):
        R(f"""
s_sub_u32 s48, s32, {j}
s_and_b32 s48, s48, 3
s_mul_i32 s48, s48, {WBASE}
v_add_u32 v9, s48, v8
""")
        for nb in range(5):
            b = PR + ((j - 1) * 5 + nb) * 4
            R(f"ds_read_b128 v[{b}:{b + 3}], v9 offset:{(j - 1) * 5120 + nb * 1024}")
    R("s_waitcnt lgkmcnt(0)")
    for j in range(1, 4):
        for nb in range(5):
            b = PR + ((j - 1) * 5 + nb) * 4
            a = ACC + (nb * 4) * 4
            for i in range(0, 4, 2):
                R(f"v_pk_add_f32 v[{a + i}:{a + i + 1}], v[{a + i}:{a + i + 1}], v[{b + i}:{b + i + 1}]")
    R("s_waitcnt vmcnt(0)")
    T = 192
    for nb in range(5):
        a = ACC + (nb * 4) * 4
        for i in range(2):
            R(f"""
v_cvt_pk_bf16_f32 v{T}, v{a + 2 * i}, v{a + 2 * i + 1}
v_lshlrev_b32 v{T + 1}, 16, v{T}
v_and_b32 v{T + 2}, 0xffff0000, v{T}
v_lshlrev_b32 v{T + 3}, 16, v{BR + 2 * nb + i}
v_and_b32 v{T + 4}, 0xffff0000, v{BR + 2 * nb + i}
v_add_f32 v{T + 1}, v{T + 1}, v{T + 3}
v_add_f32 v{T + 2}, v{T + 2}, v{T + 4}
v_cvt_pk_bf16_f32 v{T}, v{T + 1}, v{T + 2}
v_lshlrev_b32 v{T + 1}, 16, v{T}
v_and_b32 v{T + 2}, 0xffff0000, v{T}
v_lshlrev_b32 v{T + 3}, 16, v{HR + 2 * nb + i}
v_and_b32 v{T + 4}, 0xffff0000, v{HR + 2 * nb + i}
v_add_f32 v{T + 1}, v{T + 1}, v{T + 3}
v_add_f32 v{T + 2}, v{T + 2}, v{T + 4}
v_cvt_pk_bf16_f32 v{T + 6 + (nb % 2) * 2 + i}, v{T + 1}, v{T + 2}
""")
        R(f"buffer_store_dwordx2 v[{T + 6 + (nb % 2) * 2}:{T + 7 + (nb % 2) * 2}], v12, s[24:27], s46 offen offset:{nb * 32}")
    k.label(done)
    lines = k.lines()
    return dict(name=name, lines=lines, grid=256, block=256, lds=LDS_TOTAL, vgpr=208, sgpr=102)


if __name__ == "__main__":
    import sys
    from build import assemble_file
    kd = gen_k5()
    print("lines", len(kd["lines"]))
    assemble_file([kd], sys.argv[1] if len(sys.argv) > 1 else "k5.s")
    assemble_file([gen_k5(no_mfma=True)], "k5_nomfma.s")
    assemble_file([gen_k5(hot=True)], "k5_hot.s")
    assemble_file([gen_k5(stop="start")], "k5_start.s")
    assemble_file([gen_k5(stop="loop")], "k5_loop.s")
```

```python
T_COLS = 336
T_RS = T_COLS * 8
T_OFF = 0
T_SIZE = 2048 * T_RS
W1T_OFF = 6 * 1024 * 1024
W1T_SIZE = 1728 * 640 * 2
W2T_OFF = 9 * 1024 * 1024
W2T_SIZE = 640 * 1728 * 2
H_OFF = 12 * 1024 * 1024
H_SIZE = 2048 * 640 * 2
LN2_OFF = 15 * 1024 * 1024
LN2_SIZE = 2048 * 640 * 2
HID_OFF = 18 * 1024 * 1024
HID_SIZE = 2048 * 1728 * 2
WS_SIZE = 268435456
KA_X, KA_WR, KA_WI, KA_BX, KA_W1, KA_B1, KA_W2, KA_B2, KA_OUT, KA_DBG, KA_WS = [8 * i for i in range(11)]
```

```python
import sys
from build import assemble_file
from k1 import gen_k1
from k2 import gen_k2
from k3 import gen_k3
from k4 import gen_k4
from k5 import gen_k5
OUT = "sequential_preLN__spectral_gfnet__mixer_channel_mlp__prompt.s"
ks = [gen_k1(), gen_k2(), gen_k3(), gen_k4(), gen_k5()]
for kd in ks:
    print(kd["name"], "vgpr", kd["vgpr"], "lds", kd["lds"], "lines", len(kd["lines"]))
assemble_file(ks, sys.argv[1] if len(sys.argv) > 1 else OUT)
```

```python
from asmlib import Kernel
from cplx import C, SPool, f2u
from layout import *

N_FFT_WG = 168
LDS_STRIDE = 2048 + 128
LDS_XCH = 16 * LDS_STRIDE


def twiddles(k, idxf, n, den, cp):
    tw = [None]
    for m in range(1, n):
        f = k.vr(1, "twf")
        k.I("v_mul_f32 {0}, 0x%08x, {1}" % f2u(m / den), f, idxf)
        t = k.vr(2, f"tw{m}")
        k.I("v_cos_f32 {0}, {1}", t.x, f)
        k.I("v_sin_f32 {0}, {1}", t.y, f)
        tw.append(t)
    return tw


def gen_transpose(k, done):
    R = k.raw
    k.label("L_k2_tr")
    R(f"""
s_cmp_ge_u32 s2, {N_FFT_WG + 540}
s_cbranch_scc1 {done}
s_load_dwordx2 s[4:5], s[0:1], {KA_WS}
s_load_dwordx2 s[6:7], s[0:1], {KA_W1}
s_load_dwordx2 s[8:9], s[0:1], {KA_W2}
s_sub_u32 s3, s2, {N_FFT_WG}
v_lshrrev_b32 v1, 2, v0
v_and_b32 v2, 3, v0
v_lshlrev_b32 v3, 5, v2
v_mul_u32_u24 v4, {16 * 132}, v2
v_lshl_add_u32 v4, v1, 1, v4
v_mul_u32_u24 v5, 132, v1
v_add_u32 v5, v5, v3
s_waitcnt lgkmcnt(0)
s_mov_b32 s12, s6
s_mov_b32 s13, s7
s_mov_b32 s14, {640 * 1728 * 2}
s_mov_b32 s15, 0x00020000
s_mov_b32 s16, s8
s_mov_b32 s17, s9
s_mov_b32 s18, {640 * 1728 * 2}
s_mov_b32 s19, 0x00020000
s_add_u32 s20, s4, {W1T_OFF}
s_addc_u32 s21, s5, 0
s_mov_b32 s22, {W1T_SIZE}
s_mov_b32 s23, 0x00020000
s_add_u32 s24, s4, {W2T_OFF}
s_addc_u32 s25, s5, 0
s_mov_b32 s26, {W2T_SIZE}
s_mov_b32 s27, 0x00020000
L_k2_trloop:
s_cmp_lt_u32 s3, 270
s_cbranch_scc0 L_k2_trB
s_mul_i32 s30, s3, 2428
s_lshr_b32 s30, s30, 16
s_mul_i32 s31, s30, 27
s_sub_u32 s31, s3, s31
s_mul_i32 s32, s30, {64 * 3456}
s_lshl_b32 s33, s31, 7
s_add_u32 s32, s32, s33
s_mul_i32 s33, s31, {64 * 1280}
s_lshl_b32 s34, s30, 7
s_add_u32 s33, s33, s34
v_mul_u32_u24 v6, 3456, v1
v_add_u32 v6, v6, v3
v_mul_u32_u24 v7, 1280, v1
v_add_u32 v7, v7, v3
buffer_load_dwordx4 v[8:11], v6, s[12:15], s32 offen
buffer_load_dwordx4 v[12:15], v6, s[12:15], s32 offen offset:16
s_mov_b64 s[36:37], s[20:21]
s_mov_b64 s[38:39], s[22:23]
s_branch L_k2_trJ
L_k2_trB:
s_sub_u32 s35, s3, 270
s_mul_i32 s30, s35, 6554
s_lshr_b32 s30, s30, 16
s_mul_i32 s31, s30, 10
s_sub_u32 s31, s35, s31
s_mul_i32 s32, s30, {64 * 1280}
s_lshl_b32 s33, s31, 7
s_add_u32 s32, s32, s33
s_mul_i32 s33, s31, {64 * 3456}
s_lshl_b32 s34, s30, 7
s_add_u32 s33, s33, s34
v_mul_u32_u24 v6, 1280, v1
v_add_u32 v6, v6, v3
v_mul_u32_u24 v7, 3456, v1
v_add_u32 v7, v7, v3
buffer_load_dwordx4 v[8:11], v6, s[16:19], s32 offen
buffer_load_dwordx4 v[12:15], v6, s[16:19], s32 offen offset:16
s_mov_b64 s[36:37], s[24:25]
s_mov_b64 s[38:39], s[26:27]
L_k2_trJ:
s_waitcnt vmcnt(0)
""")
    for e in range(16):
        op = "ds_write_b16_d16_hi" if e % 2 else "ds_write_b16"
        R(f"{op} v4, v{8 + e // 2} offset:{e * 132}")
    R("s_waitcnt lgkmcnt(0)\ns_barrier")
    for i in range(8):
        R(f"ds_read_b32 v{16 + i}, v5 offset:{4 * i}")
    R(f"""
s_waitcnt lgkmcnt(0)
buffer_store_dwordx4 v[16:19], v7, s[36:39], s33 offen
buffer_store_dwordx4 v[20:23], v7, s[36:39], s33 offen offset:16
""")


def gen_k2(name="k2_kernel"):
    k = Kernel(name, first_vgpr=1)
    sp = SPool(60, 101)
    cp = C(k, sp)
    done = "L_k2_done"
    k.raw(f"""
s_cmp_ge_u32 s2, {N_FFT_WG}
s_cbranch_scc1 L_k2_tr
s_load_dwordx2 s[4:5], s[0:1], {KA_WS}
s_load_dwordx2 s[6:7], s[0:1], {KA_WR}
s_load_dwordx2 s[8:9], s[0:1], {KA_WI}
s_mul_i32 s56, s2, 3121
s_lshr_b32 s56, s56, 16
s_mul_i32 s57, s56, 21
s_sub_u32 s57, s2, s57
""")
    init_pos = len(k.items)
    k.raw("""
s_mul_i32 s24, s56, %d
s_mul_i32 s58, s57, 128
s_add_u32 s24, s24, s58
""" % (256 * T_RS))
    for a in range(1, 16):
        k.raw(f"s_add_u32 s{24+a}, s{23+a}, {16*T_RS}")
    k.raw("""
s_mul_i32 s40, s56, 642
s_lshl_b32 s58, s57, 5
s_add_u32 s40, s40, s58
""")
    for a in range(1, 16):
        k.raw(f"s_add_u32 s{40+a}, s{39+a}, {128*642}")
    k.raw(f"""
s_waitcnt lgkmcnt(0)
s_mov_b32 s12, s4
s_mov_b32 s13, s5
s_mov_b32 s14, {T_SIZE}
s_mov_b32 s15, 0x00020000
s_mov_b32 s16, s6
s_mov_b32 s17, s7
s_mov_b32 s18, {2048*642}
s_mov_b32 s19, 0x00020000
s_mov_b32 s20, s8
s_mov_b32 s21, s9
s_mov_b32 s22, {2048*642}
s_mov_b32 s23, 0x00020000
""")
    c = k.vr(1, "c"); r = k.vr(1, "r")
    k.I("v_and_b32 {0}, 15, v0", c)
    k.I("v_lshrrev_b32 {0}, 4, v0", r)
    voff = k.vr(1, "voffT")
    tmp = k.vr(1)
    k.I("v_mul_u32_u24 {0}, %d, {1}" % T_RS, tmp, r)
    k.I("v_lshl_add_u32 {0}, {1}, 3, {2}", voff, c, tmp)
    voffw = k.vr(1, "voffW")
    tmp2 = k.vr(1)
    k.I("v_mul_u32_u24 {0}, %d, {1}" % (8 * 642), tmp2, r)
    k.I("v_lshl_add_u32 {0}, {1}, 1, {2}", voffw, c, tmp2)
    xs = []
    for a in range(16):
        v = k.vr(2, f"x{a}")
        k.I("buffer_load_dwordx2 {0}, {1}, s[12:15], s%d offen" % (24 + a), v, voff)
        xs.append(v)
    ws = []
    for a in range(16):
        v = k.vr(2, f"w{a}")
        k.I("buffer_load_ushort {0}, {1}, s[16:19], s%d offen" % (40 + a), v.x, voffw)
        k.I("buffer_load_ushort {0}, {1}, s[20:23], s%d offen" % (40 + a), v.y, voffw)
        ws.append(v)
    rf = k.vr(1, "rf")
    k.I("v_cvt_f32_u32 {0}, {1}", rf, r)
    tw = twiddles(k, rf, 16, 256, cp)
    ldsw = k.vr(1, "ldsw"); ldsr = k.vr(1, "ldsr")
    k.I("v_lshlrev_b32 {0}, 3, v0", ldsw)
    tmp3 = k.vr(1)
    k.I("v_mul_u32_u24 {0}, %d, {1}" % LDS_STRIDE, tmp3, r)
    k.I("v_lshl_add_u32 {0}, {1}, 3, {2}", ldsr, c, tmp3)
    k.raw("s_waitcnt vmcnt(32)")
    y = cp.dft(xs, -1)
    for m in range(16):
        z = y[m] if m == 0 else cp.mul(y[m], tw[m], conj=True)
        k.I("ds_write_b64 {0}, {1} offset:%d" % (m * LDS_STRIDE), ldsw, z, ndef=0)
    k.raw("s_waitcnt lgkmcnt(0)\ns_barrier")
    xs = []
    for rr in range(16):
        v = k.vr(2, f"e{rr}")
        k.I("ds_read_b64 {0}, {1} offset:%d" % (rr * 128), v, ldsr)
        xs.append(v)
    k.raw("s_waitcnt lgkmcnt(0)")
    X = cp.dft(xs, -1)
    k.raw("s_waitcnt vmcnt(0)")
    Y = []
    for k2 in range(16):
        w = ws[k2]
        k.I("v_lshlrev_b32 {0}, 16, {1}", w.x, w.x)
        k.I("v_lshlrev_b32 {0}, 16, {1}", w.y, w.y)
        Y.append(cp.mul(X[k2], w))
    ldsw2 = k.vr(1, "ldsw2"); ldsr2 = k.vr(1, "ldsr2")
    k.I("v_add_u32 {0}, %d, {1}" % LDS_XCH, ldsw2, ldsw)
    k.I("v_add_u32 {0}, %d, {1}" % LDS_XCH, ldsr2, ldsr)
    y = cp.dft(Y, +1)
    for m in range(16):
        z = y[m] if m == 0 else cp.mul(y[m], tw[m])
        k.I("ds_write_b64 {0}, {1} offset:%d" % (m * LDS_STRIDE), ldsw2, z, ndef=0)
    k.raw("s_waitcnt lgkmcnt(0)\ns_barrier")
    xs = []
    for rr in range(16):
        v = k.vr(2, f"f{rr}")
        k.I("ds_read_b64 {0}, {1} offset:%d" % (rr * 128), v, ldsr2)
        xs.append(v)
    k.raw("s_waitcnt lgkmcnt(0)")
    U = cp.dft(xs, +1)
    for a in range(16):
        k.I("buffer_store_dwordx2 {0}, {1}, s[12:15], s%d offen" % (24 + a), U[a], voff, ndef=0)
    k.raw(f"s_branch {done}")
    gen_transpose(k, done)
    k.label(done)
    k.items[init_pos:init_pos] = sp.init
    lines = k.lines()
    return dict(name=name, lines=lines, grid=N_FFT_WG + 540, block=256, lds=2 * LDS_XCH, vgpr=k.vgpr_hi, sgpr=102)


if __name__ == "__main__":
    import sys
    from build import assemble_file
    kd = gen_k2()
    print("vgprs", kd["vgpr"], "lines", len(kd["lines"]))
    assemble_file([kd], sys.argv[1] if len(sys.argv) > 1 else "k2.s")
```

```python
from asmlib import Kernel
from cplx import f2u
from layout import *

RS = 640 * 2
HS = 1728 * 2
D = 4
STG = 30 * 1024
LDS_TOTAL = D * STG
NST = 10
ACC = 16
FR = [72, 108]


def acc(mb, nb):
    b = ACC + (mb * 7 + nb) * 4
    return "v[%d:%d]" % (b, b + 3)


def gen_k4(name="k4_kernel", stop=None, no_mfma=False):
    k = Kernel(name, first_vgpr=1)
    R = k.raw
    done = "L_k4_done"
    R(f"""
s_cmp_ge_u32 s2, 256
s_cbranch_scc1 {done}
s_load_dwordx2 s[4:5], s[0:1], {KA_WS}
s_load_dwordx2 s[6:7], s[0:1], {KA_B1}
v_readfirstlane_b32 s32, v0
s_lshr_b32 s32, s32, 6
s_and_b32 s45, s2, 7
s_lshr_b32 s33, s45, 1
s_lshl_b32 s33, s33, 2
s_lshr_b32 s46, s2, 6
s_add_u32 s33, s33, s46
s_lshl_b32 s33, s33, 7
s_and_b32 s34, s45, 1
s_lshl_b32 s34, s34, 3
s_lshr_b32 s46, s2, 3
s_and_b32 s46, s46, 7
s_add_u32 s34, s34, s46
s_mul_i32 s34, s34, 108
s_min_u32 s34, s34, 1616
s_lshl_b32 s35, s32, 10
""")
    for i in range(4):
        R(f"""
s_lshl_b32 s46, s32, 3
s_add_u32 s46, s46, {32 * i}
s_add_u32 s47, s46, s33
s_mul_i32 s{36 + i}, s47, {RS}
s_add_u32 s47, s46, s34
s_mul_i32 s{40 + i}, s47, {RS}
""")
    R(f"""
s_waitcnt lgkmcnt(0)
s_add_u32 s12, s4, {LN2_OFF}
s_addc_u32 s13, s5, 0
s_mov_b32 s14, {LN2_SIZE}
s_mov_b32 s15, 0x00020000
s_add_u32 s16, s4, {W1T_OFF}
s_addc_u32 s17, s5, 0
s_mov_b32 s18, {W1T_SIZE}
s_mov_b32 s19, 0x00020000
s_add_u32 s20, s4, {HID_OFF}
s_addc_u32 s21, s5, 0
s_mov_b32 s22, {HID_SIZE}
s_mov_b32 s23, 0x00020000
s_mov_b32 s24, s6
s_mov_b32 s25, s7
s_mov_b32 s26, {1728 * 2}
s_mov_b32 s27, 0x00020000
v_and_b32 v1, 63, v0
s_and_b32 s46, s32, 1
s_lshl_b32 s46, s46, 2
""")
    R(f"""
v_lshrrev_b32 v4, 3, v1
v_and_b32 v5, 7, v1
v_lshrrev_b32 v6, 1, v4
v_xor_b32 v5, v5, v6
v_xor_b32 v5, s46, v5
v_mul_u32_u24 v2, {RS}, v4
v_lshlrev_b32 v6, 4, v5
v_add_u32 v2, v2, v6
""")
    R(f"""
v_and_b32 v4, 15, v1
v_lshrrev_b32 v5, 4, v1
v_lshrrev_b32 v6, 1, v4
v_xor_b32 v5, v5, v6
v_lshlrev_b32 v6, 4, v5
v_lshl_add_u32 v3, v4, 7, v6
v_xor_b32 v5, 4, v5
v_lshlrev_b32 v6, 4, v5
v_lshl_add_u32 v14, v4, 7, v6
s_lshl_b32 s46, s32, 12
v_add_u32 v8, s46, v3
v_add_u32 v9, s46, v14
""")
    R(f"""
v_lshrrev_b32 v11, 4, v1
v_lshlrev_b32 v11, 3, v11
s_lshl_b32 s47, s34, 1
""")
    for nb in range(7):
        R(f"buffer_load_dwordx2 v[{144 + 2 * nb}:{145 + 2 * nb}], v11, s[24:27], s47 offen offset:{nb * 32}")
    for i in range(56):
        R(f"v_mov_b32 v{ACC + i}, 0")

    def dma(stage, nun):
        slot = stage % D
        R(f"v_add_u32 v7, {stage * 128}, v2" if stage else "v_mov_b32 v7, v2")
        for i in range(nun):
            if i < 4:
                R(f"s_add_u32 m0, s35, {slot * STG + i * 4096}")
                R(f"buffer_load_dwordx4 v7, s[12:15], s{36 + i} offen lds")
            else:
                R(f"s_add_u32 m0, s35, {slot * STG + 16384 + (i - 4) * 4096}")
                R(f"buffer_load_dwordx4 v7, s[16:19], s{40 + i - 4} offen lds")

    def reads(h):
        slot = (h // 2) % D
        fb = FR[h % 2]
        R(f"v_add_u32 v10, {slot * STG}, {'v14' if h % 2 else 'v3'}")
        R(f"v_add_u32 v11, {slot * STG}, {'v9' if h % 2 else 'v8'}")
        for mb in range(2):
            R(f"ds_read_b128 v[{fb + 28 + 4 * mb}:{fb + 28 + 4 * mb + 3}], v11 offset:{mb * 2048}")
        for nb in range(7):
            R(f"ds_read_b128 v[{fb + 4 * nb}:{fb + 4 * nb + 3}], v10 offset:{16384 + nb * 2048}")

    def mfmas(h):
        fb = FR[h % 2]
        if no_mfma: return
        for nb in range(7):
            for mb in range(2):
                R(f"v_mfma_f32_16x16x32_bf16 {acc(mb, nb)}, v[{fb + 4 * nb}:{fb + 4 * nb + 3}], v[{fb + 28 + 4 * mb}:{fb + 28 + 4 * mb + 3}], {acc(mb, nb)}")

    def mainloop(nun):
        n = NST
        for t in range(D):
            dma(t, nun)
        issued = D
        R(f"s_waitcnt vmcnt({(issued - 1) * nun})\ns_barrier")
        reads(0)
        for t in range(n):
            reads(2 * t + 1)
            R("s_waitcnt lgkmcnt(9)")
            mfmas(2 * t)
            if t + 1 < n:
                R(f"s_waitcnt vmcnt({(issued - 1 - (t + 1)) * nun}) lgkmcnt(0)\ns_barrier")
                if issued < n:
                    dma(issued, nun); issued += 1
                reads(2 * t + 2)
            else:
                R("s_waitcnt lgkmcnt(0)")
            mfmas(2 * t + 1)

    R("s_cmp_lt_u32 s32, 2\ns_cbranch_scc0 L_k4_varB")
    mainloop(8)
    R("s_branch L_k4_join")
    k.label("L_k4_varB")
    mainloop(7)
    k.label("L_k4_join")
    if stop == "loop":
        R(f"s_waitcnt vmcnt(0) lgkmcnt(0)\ns_branch {done}")
    R(f"""
v_and_b32 v10, 15, v1
v_lshrrev_b32 v11, 4, v1
v_lshlrev_b32 v11, 3, v11
v_mul_u32_u24 v12, {HS}, v10
v_add_u32 v12, v12, v11
s_lshl_b32 s46, s32, 5
s_add_u32 s46, s46, s33
s_mul_i32 s46, s46, {HS}
s_lshl_b32 s47, s34, 1
s_add_u32 s46, s46, s47
s_add_u32 s48, s46, {16 * HS}
""")
    C1 = f2u(0.7978845608028654 * 2.0 * 1.4426950408889634)
    C2 = f2u(0.044715 * 0.7978845608028654 * 2.0 * 1.4426950408889634)
    R(f"""
s_mov_b32 s50, 0x{C1:08x}
s_mov_b32 s51, 0x{C1:08x}
s_mov_b32 s52, 0x{C2:08x}
s_mov_b32 s53, 0x{C2:08x}
s_mov_b32 s54, 1.0
s_mov_b32 s55, 1.0
""")
    BF = 72
    for nb in range(7):
        for i in range(2):
            R(f"v_lshlrev_b32 v{BF + 4 * nb + 2 * i}, 16, v{144 + 2 * nb + i}")
            R(f"v_and_b32 v{BF + 4 * nb + 2 * i + 1}, 0xffff0000, v{144 + 2 * nb + i}")
    T = 108
    R(f"v_mov_b32 v{T + 6}, s50\nv_mov_b32 v{T + 7}, s50")
    for mb in range(2):
        for nb in range(7):
            a = ACC + (mb * 7 + nb) * 4
            o = T + 16 + ((mb * 7 + nb) % 2) * 2
            for i in range(2):
                bb = BF + 4 * nb + 2 * i
                R(f"""
v_cvt_pk_bf16_f32 v{T}, v{a + 2 * i}, v{a + 2 * i + 1}
v_lshlrev_b32 v{T + 2}, 16, v{T}
v_and_b32 v{T + 3}, 0xffff0000, v{T}
v_pk_add_f32 v[{T + 2}:{T + 3}], v[{T + 2}:{T + 3}], v[{bb}:{bb + 1}]
v_cvt_pk_bf16_f32 v{T}, v{T + 2}, v{T + 3}
v_lshlrev_b32 v{T + 2}, 16, v{T}
v_and_b32 v{T + 3}, 0xffff0000, v{T}
v_pk_mul_f32 v[{T + 4}:{T + 5}], v[{T + 2}:{T + 3}], v[{T + 2}:{T + 3}]
v_pk_fma_f32 v[{T + 4}:{T + 5}], v[{T + 4}:{T + 5}], s[52:53], v[{T + 6}:{T + 7}]
v_pk_mul_f32 v[{T + 4}:{T + 5}], v[{T + 4}:{T + 5}], v[{T + 2}:{T + 3}]
v_exp_f32 v{T + 4}, v{T + 4}
v_exp_f32 v{T + 5}, v{T + 5}
v_pk_add_f32 v[{T + 4}:{T + 5}], v[{T + 4}:{T + 5}], s[54:55]
v_rcp_f32 v{T + 4}, v{T + 4}
v_rcp_f32 v{T + 5}, v{T + 5}
v_pk_fma_f32 v[{T + 4}:{T + 5}], v[{T + 4}:{T + 5}], v[{T + 2}:{T + 3}], v[{T + 2}:{T + 3}] neg_lo:[1,0,0] neg_hi:[1,0,0]
v_cvt_pk_bf16_f32 v{o + i}, v{T + 4}, v{T + 5}
""")
            R(f"buffer_store_dwordx2 v[{o}:{o + 1}], v12, s[20:23], s{46 if mb == 0 else 48} offen offset:{nb * 32}")
    k.label(done)
    lines = k.lines()
    return dict(name=name, lines=lines, grid=256, block=256, lds=LDS_TOTAL, vgpr=160, sgpr=102)


if __name__ == "__main__":
    import sys
    from build import assemble_file
    kd = gen_k4()
    print("lines", len(kd["lines"]))
    assemble_file([kd], sys.argv[1] if len(sys.argv) > 1 else "k4.s")
    assemble_file([gen_k4(stop="loop")], "k4_loop.s")
    assemble_file([gen_k4(stop="loop", no_mfma=True)], "k4_nomfma.s")
```
